```python
import torch

def _softmax(x, axis=-1):
    return torch.softmax(x, dim=axis)
def _gelu(x):
    return torch.nn.functional.gelu(x, approximate="tanh")
def _silu(x):
    return torch.nn.functional.silu(x)
def _sigmoid(x):
    return torch.sigmoid(x)
def _layernorm(x, axis=-1, eps=1e-5):
    m = x.mean(dim=axis, keepdim=True)
    v = x.var(dim=axis, keepdim=True, unbiased=False)
    return (x - m) / torch.sqrt(v + eps)
def _scatter_add(tgt, idx, src, axis=0):
    return tgt.clone().index_add_(axis, idx, src)
def _segment_sum(src, seg, n):
    out = torch.zeros((n,) + src.shape[1:], dtype=src.dtype)
    return out.index_add_(0, seg, src)
def _pad(x, pw):
    flat = tuple(v for pair in reversed(pw) for v in pair)
    return torch.nn.functional.pad(x, flat)

kernel_name = 'gated_mix__linear_kernel_hedgehog__dense_activation_mish__prompt'

def setup_inputs():

    _w = (lambda a: (lambda t: t.to(torch.bfloat16) if t.is_floating_point() else t)(torch.as_tensor(a)))
    def _A_setup():
        B, S, D, H = 1, 2048, 512, 32
        Dh = D // H
        return {
            "x": _w((lambda *s: torch.randn(*s, dtype=torch.bfloat16) * 0.05)(B, S, D)),
            "wqkv": _w((lambda *s: torch.randn(*s, dtype=torch.bfloat16) * 0.8)(D, 3 * D)),
            "w_phi": _w((lambda *s: torch.randn(*s, dtype=torch.bfloat16) * 0.8)(H, Dh, Dh) * (Dh ** -0.5)),
            "wo": _w((lambda *s: torch.randn(*s, dtype=torch.bfloat16) * 0.05)(D, D)),
        }
    _A_in = _A_setup()

    def _B_setup():
        B, S, D, F = 1, 2048, 512, 1792
        return {
            "x": _w((lambda *s: torch.randn(*s, dtype=torch.bfloat16) * 0.05)(B, S, D)),
            "w1": _w((lambda *s: torch.randn(*s, dtype=torch.bfloat16) * 6.4)(D, F) * (D ** -0.5)),
            "b1": _w((lambda *s: torch.randn(*s, dtype=torch.bfloat16) * 0.1)(F)),
            "w2": _w((lambda *s: torch.randn(*s, dtype=torch.bfloat16) * 0.1)(F, D) * (F ** -0.5)),
        }
    _B_in = _B_setup()

    return {
        "A_x": _A_in["x"],
        "A_wqkv": _A_in["wqkv"],
        "A_w_phi": _A_in["w_phi"],
        "A_wo": _A_in["wo"],
        "B_x": _B_in["x"],
        "B_w1": _B_in["w1"],
        "B_b1": _B_in["b1"],
        "B_w2": _B_in["w2"],
        "gate_w": _w((lambda *s: torch.randn(*s, dtype=torch.bfloat16) * 0.05)(512) * 16.0),
    }

def reference(A_x, A_wqkv, A_w_phi, A_wo, B_x, B_w1, B_b1, B_w2, gate_w):
    def _A_ref(x, wqkv, w_phi, wo):
        B, S, D = x.shape
        H = 32; Dh = D // H
        qkv = (lambda x, *d: x.permute(*d))((x @ wqkv).reshape(B, S, 3, H, Dh), 2, 0, 3, 1, 4)
        q, k, v = qkv[0], qkv[1], qkv[2]
        pq = torch.einsum("bhsd,hdf->bhsf", q, w_phi)
        pk = torch.einsum("bhsd,hdf->bhsf", k, w_phi)
        phi_q = torch.concatenate([_softmax(pq, axis=-1), _softmax(-pq, axis=-1)], axis=-1)
        phi_k = torch.concatenate([_softmax(pk, axis=-1), _softmax(-pk, axis=-1)], axis=-1)
        kv = torch.einsum("bhsf,bhsd->bhfd", phi_k, v)
        z  = torch.einsum("bhsf->bhf", phi_k)
        num = torch.einsum("bhqf,bhfd->bhqd", phi_q, kv)
        den = torch.einsum("bhqf,bhf->bhq", phi_q, z)[..., None] + 1e-6
        o = num / den
        return (lambda x, *d: x.permute(*d))(o, 0, 2, 1, 3).reshape(B, S, D) @ wo

    def _B_ref(x, w1, b1, w2):
        h = torch.einsum("bsd,df->bsf", x, w1) + b1
        sp = torch.log1p(torch.exp(-torch.abs(h))) + torch.where(h > 0, h, torch.zeros_like(h))
        act = h * torch.tanh(sp)
        return torch.einsum("bsf,fd->bsd", act, w2)

    x = A_x
    g = _sigmoid((x * gate_w).sum(-1, keepdims=True))
    a = _A_ref(x, A_wqkv, A_w_phi, A_wo)
    b = _B_ref(x, B_w1, B_b1, B_w2)
    return g * a + (1 - g) * b
```

```python
import re

TRANS = ("v_exp_f32", "v_log_f32", "v_rcp_f32", "v_rsq_f32", "v_sqrt_f32")
REG_RE = re.compile(r"^-?\|?(?:abs\()?([vas])(\d+|\[(\d+):(\d+)\])\)?\|?$")


def regs_of(tok):
    tok = tok.strip()
    if tok in ("vcc", "exec"):
        return [(tok, 0), (tok, 1)]
    if tok in ("vcc_lo", "exec_lo"):
        return [(tok[:-3], 0)]
    if tok in ("vcc_hi", "exec_hi"):
        return [(tok[:-3], 1)]
    if tok == "m0":
        return [("m0", 0)]
    m = REG_RE.match(tok)
    if not m:
        return []
    if m.group(3) is not None:
        return [(m.group(1), i) for i in range(int(m.group(3)), int(m.group(4)) + 1)]
    return [(m.group(1), int(m.group(2)))]


class I:
    def __init__(self, text, tag=None, cost=None):
        self.text = text
        self.tag = tag
        mn, _, rest = text.partition(" ")
        self.mn = mn
        ops = [o.strip() for o in rest.split(",")] if rest.strip() else []
        mods = ""
        if ops:
            last = ops[-1].split()
            ops[-1] = last[0]
            mods = " ".join(last[1:])
        self.ops, self.mods = ops, mods
        R = lambda lst: [r for o in lst for r in regs_of(o)]
        self.srcc = []
        self.passes = 0
        self.wide_store = False
        self.async_dst = False
        if mn.startswith("v_mfma"):
            self.kind = "mfma"
            self.w = R(ops[:1]); self.ab = R(ops[1:3]); self.srcc = R(ops[3:4]); self.r = self.ab + self.srcc
            self.passes = 8 if "32x32" in mn else 4
        elif mn.startswith("v_"):
            self.kind = "trans" if mn.startswith(TRANS) else "valu"
            if mn.startswith("v_permlane"):
                self.w = R(ops[:2]); self.r = R(ops[:2])
            elif mn.startswith(("v_add_co", "v_addc_co", "v_sub_co")):
                self.w = R(ops[:2]); self.r = R(ops[2:])
            else:
                self.w = R(ops[:1]); self.r = R(ops[1:])
                if mn.startswith(("v_fmac", "v_dot2c")):
                    self.r += self.w
        elif mn.startswith("ds_"):
            self.kind = "ds"
            if mn.startswith("ds_read"):
                self.w = R(ops[:1]); self.r = R(ops[1:]); self.async_dst = True
            else:
                self.w = []; self.r = R(ops)
        elif mn.startswith(("buffer_", "global_")):
            self.kind = "vmem"
            lds = " lds" in (" " + mods)
            self.lds = lds
            if "load" in mn and not lds:
                self.w = R(ops[:1]); self.r = R(ops[1:]); self.async_dst = True
            else:
                self.w = []; self.r = R(ops)
                if lds:
                    self.r.append(("m0", 0))
                if mn.endswith(("dwordx4", "dwordx3")) and "store" in mn:
                    self.wide_store = True
                    self.sdata = R(ops[:1]) if mn.startswith("buffer") else R(ops[1:2])
        elif mn.startswith("s_load") or mn in ("s_memtime", "s_memrealtime"):
            self.kind = "smem"
            self.w = R(ops[:1]); self.r = R(ops[1:])
        elif mn in ("s_waitcnt", "s_barrier", "s_nop", "s_endpgm", "s_sleep", "s_setprio") or mn.startswith(("s_branch", "s_cbranch")):
            self.kind = "ctl"; self.w = []; self.r = []
            if "vcc" in mn:
                self.r = [("vcc", 0), ("vcc", 1)]
        elif mn.startswith("s_cmp"):
            self.kind = "salu"; self.w = []; self.r = R(ops)
        elif mn.startswith("s_"):
            self.kind = "salu"; self.w = R(ops[:1]); self.r = R(ops[1:])
            if "saveexec" in mn:
                self.w += [("exec", 0), ("exec", 1)]
        else:
            raise ValueError("unknown instruction: " + text)
        if cost is None:
            cost = {"trans": 8, "mfma": 8}.get(self.kind, 4)
        self.cost = cost

    def states(self):
        if self.mn == "s_nop":
            return int(self.ops[0]) + 1
        return 1


class WaitVM:
    cost = 2
    def __init__(self, tag): self.tag = tag


class WaitLGKM0:
    cost = 2


class Raw:
    cost = 0
    def __init__(self, text): self.text = text


class Call:
    cost = 0
    def __init__(self, fn, cost=0): self.fn = fn; self.cost = cost


def need_states(p, c):
    n = 0
    pw = set(p.w)
    isv = p.kind in ("valu", "trans")
    cisv = c.kind in ("valu", "trans")
    if isv:
        vw = {r for r in pw if r[0] in "va"}
        sw = {r for r in pw if r[0] in ("s", "vcc")}
        if c.kind == "mfma" and vw & set(c.r): n = max(n, 2)
        if c.mn.startswith("v_permlane") and vw & set(c.r): n = max(n, 2)
        if "row_" in c.mods and vw & set(c.r): n = max(n, 2)
        if c.mn.startswith(("v_readlane", "v_readfirstlane")) and vw & set(c.r): n = max(n, 1)
        if p.kind == "trans" and c.kind != "trans" and vw & set(c.r): n = max(n, 1)
        if sw & set(c.r):
            if cisv: n = max(n, 4 if c.mn.startswith(("v_readlane", "v_writelane")) else 2)
            elif c.kind == "vmem": n = max(n, 5)
            else: n = max(n, 1)
    if p.kind == "mfma":
        big = p.passes == 8
        if c.kind == "mfma":
            if pw & set(c.ab): n = max(n, 12 if big else 8)
            if pw & set(c.srcc):
                if not (c.srcc == p.w and c.passes == p.passes): n = max(n, 10 if big else 6)
            elif pw & set(c.w) and not (c.w == p.w and c.passes == p.passes):
                n = max(n, 10 if big else 6)
        elif c.kind in ("valu", "trans", "ds", "vmem"):
            if pw & (set(c.r) | set(c.w)): n = max(n, 12 if big else 8)
            if cisv and set(p.srcc) & set(c.w): n = max(n, 7 if big else 3)
    if p.kind == "salu" and ("m0", 0) in pw and c.kind == "vmem" and ("m0", 0) in c.r: n = max(n, 1)
    if p.wide_store and set(p.sdata) & set(c.w): n = max(n, 2)
    return n


class Prog:
    def __init__(self):
        self.out = []
        self.hist = []
        self.vm_n = 0
        self.vm_done = 0
        self.vm_tag = {}
        self.vm_reg = {}
        self.ds_n = 0
        self.ds_done = 0
        self.ds_reg = {}
        self.nops = 0
        self.count = {}
        self.issue = 0

    def fork(self):
        p = Prog()
        p.hist = list(self.hist)
        p.vm_n, p.vm_done, p.vm_tag, p.vm_reg = self.vm_n, self.vm_done, dict(self.vm_tag), dict(self.vm_reg)
        p.ds_n, p.ds_done, p.ds_reg = self.ds_n, self.ds_done, dict(self.ds_reg)
        return p

    def _put(self, ins):
        self.out.append("    " + ins.text)
        self.hist.append(ins)
        if len(self.hist) > 24: self.hist.pop(0)
        self.count[ins.kind] = self.count.get(ins.kind, 0) + 1
        self.issue += ins.cost if ins.mn != "s_nop" else 4 * ins.states()

    def _wait(self, vm=None, lg=None):
        parts = []
        if vm is not None and vm >= self.vm_done:
            n = self.vm_n - 1 - vm
            if n <= 63:
                parts.append(f"vmcnt({n})")
            self.vm_done = vm + 1
        if lg is not None and lg >= self.ds_done:
            n = min(self.ds_n - 1 - lg, 15)
            parts.append(f"lgkmcnt({n})")
            self.ds_done = self.ds_n - n
        if parts:
            self._put(I("s_waitcnt " + " ".join(parts)))

    def wait_all_vm(self):
        if self.vm_n > self.vm_done: self._wait(vm=self.vm_n - 1)

    def add(self, x):
        if isinstance(x, str):
            x = Raw(x) if (x.endswith(":") or x.startswith((".", ";"))) else I(x)
        if isinstance(x, (list, tuple)):
            for y in x: self.add(y)
            return
        if isinstance(x, Atom):
            for y in x.items: self.add(y)
            return
        if isinstance(x, Raw):
            self.out.append(x.text); return
        if isinstance(x, Call):
            x.fn(self); return
        if isinstance(x, WaitVM):
            self._wait(vm=self.vm_tag[x.tag]); return
        if isinstance(x, WaitLGKM0):
            if self.ds_n > self.ds_done: self._wait(lg=self.ds_n - 1)
            return
        ins = x
        touched = set(ins.r) | set(ins.w)
        vm = max([self.vm_reg[r] for r in touched if r in self.vm_reg], default=None)
        lg = max([self.ds_reg[r] for r in touched if r in self.ds_reg], default=None)
        self._wait(vm=vm, lg=lg)
        dist, pad = 0, 0
        for p in reversed(self.hist):
            n = need_states(p, ins)
            if n > dist: pad = max(pad, n - dist)
            dist += p.states()
        while pad > 0:
            k = min(pad, 16)
            self._put(I(f"s_nop {k-1}")); self.nops += k; pad -= k
        self._put(ins)
        if ins.kind == "vmem":
            seq = self.vm_n; self.vm_n += 1
            if ins.tag: self.vm_tag[ins.tag] = seq
            if ins.async_dst:
                for r in ins.w: self.vm_reg[r] = seq
        elif ins.kind == "ds":
            seq = self.ds_n; self.ds_n += 1
            if ins.async_dst:
                for r in ins.w: self.ds_reg[r] = seq

    def text(self):
        return "\n".join(self.out)


def cost_of(lst):
    return sum(getattr(x, "cost", 4) if not isinstance(x, str) else I(x).cost for x in lst)


def norm(lst):
    out = []
    for x in lst:
        if isinstance(x, (list, tuple)): out += norm(x)
        elif isinstance(x, str): out.append(Raw(x) if (x.endswith(":") or x.startswith((".", ";"))) else I(x))
        else: out.append(x)
    return out


class Atom:
    def __init__(self, items):
        self.items = norm(items)
        self.cost = sum(x.cost for x in self.items)


def merge(primary, fillers):
    primary = norm(primary)
    isgap = lambda x: isinstance(x, I) and x.kind == "mfma" and x.tag != "nogap"
    ngaps = sum(1 for x in primary if isgap(x))
    st = []
    for items, g0, g1 in fillers:
        items = [x if isinstance(x, Atom) else Atom([x]) for x in norm(items)] if items else []
        g1 = min(g1, ngaps - 1); g0 = min(g0, g1)
        st.append([items, g0, g1, sum(a.cost for a in items), 0, 0])
    out, g = [], 0
    for x in primary:
        out.append(x)
        if isgap(x):
            for s in st:
                items, g0, g1, total, pos, done = s
                if g < g0: continue
                target = total * (g - g0 + 1) / (g1 - g0 + 1) if g < g1 else total + 1
                while pos < len(items) and done + items[pos].cost / 2 <= target:
                    out += items[pos].items; done += items[pos].cost; pos += 1
                s[4], s[5] = pos, done
            g += 1
    for s in st:
        assert s[4] == len(s[0]), "filler left over"
    return out
```

```python
import sys
from asmlib import *

NAME = "gated_mix__linear_kernel_hedgehog__dense_activation_mish__prompt"
KN = NAME + "_kernel"

FLAGS, ZP, KVP, AF = 0, 0x10000, 0x20000, 0x100000
RT_STRIDE = 144 * 1024
WS_BYTES = 0xA00000
STAMP = 0xA00000
CH = 16384
MISC = 9 * CH
GATE_L, WPHI_L, BITMAP_L, KVT_L = MISC, MISC + 1024, MISC + 3072, MISC + 4096
RED_STRIDE = 272
RED_PART = 64 * RED_STRIDE
S_X, S_WQ, S_W1, S_W2, S_WO, S_WS, S_OUT, S_DBG, S_WPHI, S_B1, S_GATE = 4, 8, 12, 16, 20, 24, 28, 32, 36, 40, 44
sW, sRB, sCG, sHG, sRB2, sCB, sTAG, sXO = 50, 51, 52, 53, 54, 55, 56, 57
sBLK = [58, 59, 60, 61]
sL2K, sL4K, sAF4, sAF2, sAFLD, sW2B, sW2A, sWO, sKV, sZ, sOUT, sLOG = 62, 63, 64, 65, 66, 67, 68, 69, 70, 71, 72, 73
sLEAD, sP = 74, 75
sTD, sTS, sTA, sTG, sSPIN, sT1, sT2, sT3 = 76, 77, 78, 79, 80, 81, 82, 83
sSTAMP = 84
vL, vL16, vL16B, vT = 0, 1, 2, 3
vXG, vWG1, vWG2, vWGH, vW2G = 4, 8, 12, 16, 20
vWR, vW2R, vHR, vPT, vXR = 24, 30, 36, 39, 40
vKXW, vKXP, vKXV, vKVST, vZST, vZLD, vKVT = 40, 43, 44, 45, 46, 47, 48
vGR, vG, vC, vM2C, vPA, vKPA, vPD, vFA, vFV, vBO, vWPR, vTG = 52, 53, 54, 55, 56, 57, 58, 59, 60, 61, 62, 63
ACX, ACY, AC2, TMP = 64, 96, 128, 192
aX, aWF, aGF, aWPHI, aBIAS, aONE = 0, 128, 160, 176, 184, 194
aC0, aC1 = 160, 164
LOG2E = "0x3fb8aa3b"


def srd(n): return f"s[{n}:{n+3}]"
def vr(n, k=4): return f"v[{n}:{n+k-1}]"
def ar(n, k=4): return f"a[{n}:{n+k-1}]"
def win(base, stride, off): return base + stride * (off >> 16), off & 0xffff


class Cfg:
    diag = False
    la_chase = 1
    la = 2
    pace = 8
    pace2 = 4
    la_a = 6
    poll_lead = 3
    chk_b0 = -6
    chk_b1 = 4
    chk_a0 = 11
    chk_a1 = 18
    chk_o = 26
    kv_poll = 3
    out_flags = ""
    code_kb = 44
    stamps = "c0,b1_0,b2_0,end1,kvflag,chk_kv,oflag,chk_o,mend,end"


def k2o(c): return c.kv_poll + c.poll_lead


class Step:
    def __init__(self, reads, mfmas, stage, p2=False):
        self.reads, self.mfmas, self.stage, self.p2 = reads, mfmas, stage, p2


class Gen:
    def __init__(self, typ, cfg, side):
        self.typ, self.cfg, self.side = typ, cfg, side
        self.nstamp = 0; self.stamps = []

    def plan(self):
        c, A = self.cfg, self.typ == "A"
        stages = []
        for a in range(8): stages.append((f"c{a}", 4 * a, 4, [f"x{a}", f"s{a}"]))
        s = 32
        for b in (1, 2):
            for k in range(4): stages.append((f"b{b}_{k}", s, 8, [f"w{b}_{k}"])); s += 8
        if A:
            for k in range(2): stages.append((f"h{k}", s, 16, [f"w3_{k}"])); s += 16
        self.p1 = s
        for g in range(18): stages.append((f"g{g}", s + 2 * g, 2, [f"g{g}"]))
        self.nsteps = s + 36
        self.stages = stages
        self.la = lambda i: c.la_chase if i < 32 else c.la
        self.rd_it = [max(0, i - self.la(i)) for i in range(self.nsteps)]
        for i in range(1, self.nsteps): self.rd_it[i] = max(self.rd_it[i], self.rd_it[i - 1])
        self.bar = {}
        for name, f, n, jobs in stages:
            if f < self.p1: self.bar[self.rd_it[f]] = name
        self.bar_end = self.p1 + 1
        self.bar[self.bar_end] = "end1"
        bars = sorted(self.bar)
        def free_it(name, f, n):
            last = f + n - 1
            if f >= self.p1: return last + 1
            if f < 32: return min(b for b in bars if b > self.rd_it[last])
            return min(b for b in bars if b > last)
        order = []
        for a in range(8): order += [f"x{a}"] + ([f"s{a}"] if a % 2 == 0 else [])
        order += [f"w1_{k}" for k in range(4)]
        if A: order += ["P0", "P1"]
        order += [f"w2_{k}" for k in range(2)]
        if A: order += ["V"]
        order += [f"w2_{k}" for k in range(2, 4)]
        if A: order += ["w3_0", "w3_1"]
        order += [f"g{g}" for g in range(18)]
        rel = {}
        for name, f, n, jobs in stages:
            for j in jobs:
                if j.startswith("s"):
                    a = int(j[1:])
                    if a % 2: rel[f"s{a-1}"] = free_it(name, f, n)
                else: rel[j] = free_it(name, f, n)
        if A:
            kvfree = [b for b in bars if self.bar[b] == "b2_3"][0]
            rel["P0"] = rel["P1"] = rel["V"] = kvfree
        chunk, avail = {}, {}
        free = [(0, k) for k in range(9)]
        for j in order:
            free.sort()
            t, k = free.pop(0)
            chunk[j], avail[j] = k, t
            free.append((rel[j], k))
        for a in range(1, 8, 2): chunk[f"s{a}"], avail[f"s{a}"] = chunk[f"s{a-1}"], avail[f"s{a-1}"]
        if A: assert avail["P0"] <= 32 and avail["P1"] <= 32 and avail["V"] <= 64
        self.chunk, self.avail, self.order = chunk, avail, order

    def dma_job(self, j):
        A = self.typ == "A"
        base = self.chunk[j] * CH
        def ops(n, vg, s, sbase, so, lbase, lo):
            l = [Atom([f"s_add_u32 m0, s{lbase}, {lo}", f"s_add_u32 s{sTD}, s{sbase}, {so}",
                       I(f"buffer_load_dwordx4 v{vg}, {srd(s)}, s{sTD} offen lds", tag=j, cost=8)])]
            for i in range(1, n):
                l.append(I(f"buffer_load_dwordx4 v{vg+i}, {srd(s)}, s{sTD} offen offset:{i*1024} lds", tag=j, cost=8))
            return l
        m1, st1 = (S_WQ, 3072) if A else (S_W1, 3584)
        m2, st2 = (S_W1, 3584) if A else (S_WQ, 3072)
        if j[0] == "x":
            return ops(4, vXG, S_X, sXO, int(j[1:]) * 128, sL4K, base)
        if j[0] == "s":
            a = int(j[1:])
            return ops(2, vWG1, m1, sBLK[0], 64 * a * st1, sL2K, base + (a & 1) * 8192)
        if j[0] == "w":
            b, k = int(j[1]), int(j[3])
            if b == 1: return ops(4, vWG1, m1, sBLK[1], 128 * k * st1, sL4K, base)
            if b == 2: return ops(4, vWG2, m2, sBLK[2], 128 * k * st2, sL4K, base)
            return ops(4, vWGH, S_W1, sBLK[3], 256 * k * 3584, sL4K, base)
        if j[0] == "g":
            g = int(j[1:])
            if g < 8: s, sb, row = S_W2, sW2B, 128 * ((g & 3) >> 1) + 64 * (g >> 2) + 32 * (g & 1)
            elif g < 12: s, sb, row = S_W2, sW2A, 128 * ((g - 8) >> 1) + 32 * (g & 1)
            elif g < 14: s, sb, row = S_W2, sW2A, 64 + 32 * (g - 12)
            else: s, sb, row = S_WO, sWO, 32 * (g - 14)
            return ops(4, vW2G, s, sb, row * 1024, sL4K, base)
        return []

    def a_slot(self, j):
        slots = [200 + 8 * i for i in range(7)] + [8 * i for i in range(16)]
        return slots[j % len(slots)]

    def build_steps(self):
        A = self.typ == "A"
        steps = []
        def wfrag(i): return aWF + 8 * (i % 4)
        def trs(dst, reg, off, d2):
            return [f"ds_read_b64_tr_b16 {ar(dst,2)}, v{reg} offset:{off}", f"ds_read_b64_tr_b16 {ar(dst+2,2)}, v{reg} offset:{off+d2}"]
        def mf(acc, a, b, c): return f"v_mfma_f32_32x32x16_bf16 {vr(acc,16)}, {a}, {b}, {c}"
        accs = [ACX, ACY, ACX, ACY]
        bias_of = {("A", 2): 0, ("A", 3): 2, ("B", 0): 0, ("B", 1): 2}
        for b in range(4 if A else 3):
            acc = accs[b]
            nt = 1 if b == 3 else 2
            for s in range(32):
                i = len(steps)
                rd, mm = [], []
                if b == 0:
                    a, u = s >> 2, s & 3
                    r, o = win(vXR + u, 4, self.chunk[f"x{a}"] * CH)
                    rd.append(f"ds_read_b128 {ar(aX+4*s)}, v{r} offset:{o}")
                    off = self.chunk[f"s{a}"] * CH + (s & 7) * 2048
                    stage = f"c{a}"
                elif b < 3:
                    off = self.chunk[f"w{b}_{s>>3}"] * CH + (s & 7) * 2048
                    stage = f"b{b}_{s>>3}"
                else:
                    off = self.chunk[f"w3_{s>>4}"] * CH + (s & 15) * 1024
                    stage = f"h{s>>4}"
                for t in range(nt):
                    if b < 3:
                        r, o = win(vWR + t, 2, off); rd += trs(wfrag(i) + 4 * t, r, o, 512)
                    else:
                        r, o = win(vHR, 1, off); rd += trs(wfrag(i), r, o, 256)
                if b == 0:
                    rd.append(f"ds_read_b128 {ar(aGF+4*(s&3))}, v{vGR} offset:{s*32}")
                for t in range(nt):
                    c = vr(acc + 16 * t, 16)
                    if s == 0:
                        if (self.typ, b) in bias_of:
                            mm.append(mf(acc + 16 * t, ar(aBIAS + 2 * (bias_of[(self.typ, b)] + t)), ar(aONE), "0"))
                        else: c = "0"
                    mm.append(mf(acc + 16 * t, ar(wfrag(i) + 4 * t), ar(aX + 4 * s), c))
                if b == 0:
                    mm.append(mf(AC2, ar(aGF + 4 * (s & 3)), ar(aX + 4 * s), "0" if s == 0 else vr(AC2, 16)))
                steps.append(Step(rd, mm, stage))
        for j in range(36):
            i = len(steps)
            off = self.chunk[f"g{j>>1}"] * CH + (j & 1) * 2048
            rd = []
            for t in range(2):
                r, o = win(vW2R + t, 2, off); rd += trs(wfrag(i) + 4 * t, r, o, 1024)
            mm = []
            for rt in range(2):
                for t in range(2):
                    acc = AC2 + 16 * (2 * rt + t)
                    mm.append(mf(acc, ar(wfrag(i) + 4 * t), ar(self.a_slot(j) + 4 * rt), "0" if j == 0 else vr(acc, 16)))
            steps.append(Step(rd, mm, f"g{j>>1}", True))
        self.steps = steps

    def gate_fin(self):
        return [f"v_mul_f32 v{vG}, 0xbfb8aa3b, v{AC2}", f"v_exp_f32 v{vG}, v{vG}", f"v_add_f32 v{vG}, 1.0, v{vG}",
                f"v_rcp_f32 v{vG}, v{vG}", f"v_sub_f32 v{vC}, 1.0, v{vG}", f"v_mul_f32 v{vM2C}, -2.0, v{vC}"]

    def h_epi(self, acc, sbase, seg, slot, tag):
        W, O = TMP + 40, TMP + 48
        l = []
        for half in range(2):
            o = O + 4 * ((slot * 2 + half) & 3)
            for grp in range(2):
                e = [acc + 8 * half + 4 * grp + k for k in range(4)]
                w = [W + 4 * grp + k for k in range(4)]
                l += [f"v_mul_f32 v{w[k]}, s{sLOG}, v{e[k]}" for k in range(4)]
                l += [f"v_exp_f32 v{w[k]}, v{w[k]}" for k in range(4)]
                l += [f"v_add_f32 v{w[k]}, 1.0, v{w[k]}" for k in range(4)]
                l += [f"v_fma_f32 v{w[k]}, v{w[k]}, v{w[k]}, 1.0" for k in range(4)]
                l += [f"v_rcp_f32 v{w[k]}, v{w[k]}" for k in range(4)]
                l += [f"v_fma_f32 v{w[k]}, v{w[k]}, v{vM2C}, v{vC}" for k in range(4)]
                l += [f"v_mul_f32 v{w[k]}, v{e[k]}, v{w[k]}" for k in range(4)]
                l += [f"v_cvt_pk_bf16_f32 v{o+2*grp+k}, v{w[2*k]}, v{w[2*k+1]}" for k in range(2)]
            st = I(f"buffer_store_dwordx4 {vr(o)}, v{vL16}, {srd(S_WS)}, s{sTS} offen offset:{(2*slot+half)*1024} sc1", tag=tag, cost=8)
            l.append(Atom([f"s_add_u32 s{sTS}, s{sbase}, {seg*1024}", st]))
        return l

    def feat_head(self, acc):
        K = TMP + 32
        l = [f"v_cvt_pk_bf16_f32 v{K+i}, v{acc+2*i}, v{acc+2*i+1}" for i in range(16)]
        for t, D in ((0, TMP), (1, acc)):
            for hd in range(2):
                l.append(f"v_mfma_f32_32x32x16_bf16 {vr(D+16*hd,16)}, {ar(aWPHI+4*t)}, {vr(K+8*t+4*hd)}, 0")
        return l

    def softmax(self, D, out):
        P = [D, D + 24]; E = [D + 8, D + 16]
        S = TMP + 48
        mx, mn, t0, t1 = [S, S + 1], [S + 2, S + 3], S + 4, S + 5
        l = []
        for k, (a, b) in enumerate(((0, None), (3, 4), (5, 6), (7, None))):
            for op, r in (("max", mx), ("min", mn)):
                for h in range(2):
                    p = P[h]
                    if k == 0: l.append(f"v_{op}3_f32 v{r[h]}, v{p}, v{p+1}, v{p+2}")
                    elif b is None: l.append(f"v_{op}_f32 v{r[h]}, v{r[h]}, v{p+a}")
                    else: l.append(f"v_{op}3_f32 v{r[h]}, v{r[h]}, v{p+a}, v{p+b}")
        l += [f"v_permlane32_swap_b32 v{mx[0]}, v{mx[1]}", f"v_permlane32_swap_b32 v{mn[0]}, v{mn[1]}",
              f"v_max_f32 v{mx[0]}, v{mx[0]}, v{mx[1]}", f"v_min_f32 v{mn[0]}, v{mn[0]}, v{mn[1]}",
              f"v_mul_f32 v{mx[0]}, s{sLOG}, v{mx[0]}", f"v_mul_f32 v{mn[0]}, s{sLOG}, v{mn[0]}",
              f"v_mov_b32 v{mx[1]}, v{mx[0]}", f"v_mov_b32 v{mn[1]}, v{mn[0]}", "s_nop 0",
              f"v_permlane32_swap_b32 v{mx[0]}, v{mx[1]}", f"v_permlane32_swap_b32 v{mn[0]}, v{mn[1]}"]
        for h in range(2):
            for g in range(2):
                idx = range(4 * g, 4 * g + 4)
                l += [f"v_fma_f32 v{E[h]+k}, v{P[h]+k}, -s{sLOG}, v{mn[h]}" for k in idx]
                l += [f"v_fma_f32 v{P[h]+k}, v{P[h]+k}, s{sLOG}, -v{mx[h]}" for k in idx]
                l += [f"v_exp_f32 v{E[h]+k}, v{E[h]+k}" for k in idx]
                l += [f"v_exp_f32 v{P[h]+k}, v{P[h]+k}" for k in idx]
        sp, sm = mx, mn
        for k in range(1, 8):
            for r, src in ((sp, P), (sm, E)):
                for h in range(2):
                    a = f"v{src[h]}" if k == 1 else f"v{r[h]}"
                    l.append(f"v_add_f32 v{r[h]}, {a}, v{src[h]+k}")
        l += [f"v_permlane32_swap_b32 v{sp[0]}, v{sp[1]}", f"v_permlane32_swap_b32 v{sm[0]}, v{sm[1]}",
              f"v_add_f32 v{sp[0]}, v{sp[0]}, v{sp[1]}", f"v_add_f32 v{sm[0]}, v{sm[0]}, v{sm[1]}",
              f"v_rcp_f32 v{sp[0]}, v{sp[0]}", f"v_rcp_f32 v{sm[0]}, v{sm[0]}",
              f"v_mov_b32 v{sp[1]}, v{sp[0]}", f"v_mov_b32 v{sm[1]}, v{sm[0]}", "s_nop 0",
              f"v_permlane32_swap_b32 v{sp[0]}, v{sp[1]}", f"v_permlane32_swap_b32 v{sm[0]}, v{sm[1]}"]
        post = []
        for h in range(2):
            for sg, (src, r) in enumerate(((P, sp), (E, sm))):
                q = [f"v_mul_f32 v{src[h]+k}, v{r[h]}, v{src[h]+k}" for k in range(8)]
                q += [f"v_cvt_pk_bf16_f32 v{out[2*h+sg]+k}, v{src[h]+2*k}, v{src[h]+2*k+1}" for k in range(4)]
                post.append(q)
        return l, post

    def flag(self, stage, tag):
        return [WaitVM(tag), Atom([f"s_add_u32 s{sT3}, s{sTAG}, {stage}",
                                   f"v_mov_b32 v{vFV}, s{sT3}", "s_mov_b64 exec, 1",
                                   I(f"buffer_store_dword v{vFV}, v{vFA}, {srd(S_WS)}, 0 offen sc1", cost=8), "s_mov_b64 exec, -1"])]

    def poll_load(self, va):
        return I(f"buffer_load_dword v{vPD}, v{va}, {srd(S_WS)}, 0 offen sc1", cost=8)

    def poll_check(self, va, need, mask, name):
        lab = f"{self.typ}_{name}"
        chk = [f"v_subrev_u32 v{vPT}, s{sT1}, v{vPD}", f"v_cmp_gt_u32 vcc, {8-need}, v{vPT}", f"s_andn2_b32 s{sT2}, {mask}, vcc_lo"]
        def side(p):
            q = Prog()
            q.add([f"L_retry_{lab}:", f"s_add_u32 s{sSPIN}, s{sSPIN}, 1", f"s_cmp_gt_u32 s{sSPIN}, 0x40000", "s_cbranch_scc1 L_end",
                   self.poll_load(va), "s_waitcnt vmcnt(0)"])
            q.vm_done = q.vm_n
            q.add(chk + [f"s_cbranch_scc1 L_retry_{lab}", "s_nop 1", f"s_branch L_back_{lab}"])
            self.side.append(q.text())
        return Atom([f"s_add_u32 s{sT1}, s{sTAG}, {need}"] + chk + [f"s_cbranch_scc1 L_retry_{lab}", f"L_back_{lab}:", Call(side)])

    def tag_check(self):
        lab = self.typ + "_tag"
        chk = [f"v_readfirstlane_b32 s{sTAG}, v{vTG}", f"s_cmp_eq_u32 s{sTAG}, 0"]
        def side(p):
            q = Prog()
            q.add([f"L_retry_{lab}:", f"s_add_u32 s{sSPIN}, s{sSPIN}, 1", f"s_cmp_gt_u32 s{sSPIN}, 0x40000", "s_cbranch_scc1 L_end",
                   f"buffer_load_dword v{vTG}, off, {srd(S_DBG)}, 0 sc1", "s_waitcnt vmcnt(0)"])
            q.vm_done = q.vm_n
            q.add(chk + [f"s_cbranch_scc1 L_retry_{lab}", "s_nop 1", f"s_branch L_back_{lab}"])
            self.side.append(q.text())
        return Atom(chk + [f"s_cbranch_scc1 L_retry_{lab}", f"L_back_{lab}:", Call(side)])

    def stamp(self, name):
        if not self.cfg.diag or name not in self.cfg.stamps.split(","): return []
        assert self.nstamp < 9
        k = sSTAMP + 2 * self.nstamp; self.nstamp += 1; self.stamps.append(name)
        def after(p): p.ds_done = p.ds_n
        return [Atom([f"s_memrealtime s[{k}:{k+1}]", "s_waitcnt lgkmcnt(0)", Call(after)])]

    def a_block1(self):
        ch = self.chunk
        l = self.feat_head(ACX) + self.gate_fin()
        l += [f"v_and_b32 v{vT}, 31, v{vL}", f"v_lshl_add_u32 v{vT}, s{sW}, 5, v{vT}", f"v_lshlrev_b32 v{vKXW}, 5, v{vT}",
              f"v_lshrrev_b32 v{vT}, 5, v{vL}", f"v_lshl_add_u32 v{vKXW}, v{vT}, 4, v{vKXW}",
              f"v_add_u32 v{vKXW+1}, 0x10000, v{vKXW}", f"v_add_u32 v{vKXW+2}, 0x20000, v{vKXW}"]
        for k in range(4): l.append(f"v_accvgpr_write_b32 a{aC0+k}, s{sP}")
        O = [TMP + 32 + 4 * k for k in range(4)]
        for t, D in ((0, TMP), (1, ACX)):
            body, post = self.softmax(D, O)
            l += body
            for k, q in enumerate(post):
                r, o = win(vKXW, 1, ch[f"P{t}"] * CH + k * 4096)
                l += q + [f"ds_write_b128 v{r}, {vr(O[k])} offset:{o}"]
        return l

    def a_vepi(self):
        l = []
        for hd in range(4):
            l += [f"v_cvt_pk_bf16_f32 v{TMP+4*hd+k}, v{ACY+8*hd+2*k}, v{ACY+8*hd+2*k+1}" for k in range(4)]
            r, o = win(vKXW, 1, self.chunk["V"] * CH + hd * 4096)
            l.append(f"ds_write_b128 v{r}, {vr(TMP+4*hd)} offset:{o}")
        ch = self.chunk
        l += [f"s_mov_b32 s{sT1}, {ch['P0']*CH}", f"s_mov_b32 s{sT2}, {ch['P1']*CH}",
              Atom([f"s_cmp_lt_u32 s{sW}, 2", f"s_cselect_b32 s{sT1}, s{sT1}, s{sT2}"]),
              f"s_and_b32 s{sT2}, s{sW}, 1", f"s_lshl_b32 s{sT2}, s{sT2}, 13", f"s_add_u32 s{sT1}, s{sT1}, s{sT2}",
              f"v_lshl_add_u32 v{vKXP}, v{vL}, 3, s{sT1}", f"s_add_u32 s{sT2}, s{sL4K}, {ch['V']*CH}",
              f"v_lshl_add_u32 v{vKXV}, v{vL}, 3, s{sT2}",
              f"v_and_b32 v{vKVST}, 0x33, v{vL}", f"v_and_b32 v{vT}, 4, v{vL}", f"v_lshl_or_b32 v{vKVST}, v{vT}, 1, v{vKVST}",
              f"v_bfe_u32 v{vT}, v{vL}, 3, 1", f"v_lshl_or_b32 v{vKVST}, v{vT}, 2, v{vKVST}",
              f"v_and_b32 v{vZST}, 31, v{vKVST}", f"v_lshlrev_b32 v{vZST}, 2, v{vZST}", f"v_lshlrev_b32 v{vKVST}, 4, v{vKVST}"]
        return l

    def a_kv(self):
        V, PH, D = TMP, TMP + 16, TMP + 48
        l = []
        for k in range(4):
            l += [f"ds_read_b64_tr_b16 {vr(V+4*k,2)}, v{vKXV} offset:{k*1024}", f"ds_read_b64_tr_b16 {vr(V+4*k+2,2)}, v{vKXV} offset:{k*1024+512}"]
            for sg in range(2):
                q = PH + 16 * sg + 4 * k
                l += [f"ds_read_b64_tr_b16 {vr(q,2)}, v{vKXP} offset:{sg*4096+k*1024}", f"ds_read_b64_tr_b16 {vr(q+2,2)}, v{vKXP} offset:{sg*4096+k*1024+512}"]
        for k in range(4):
            for sg in range(2):
                q = PH + 16 * sg + 4 * k
                l.append(f"v_mfma_f32_16x16x32_bf16 {vr(D+4*sg)}, {vr(V+4*k)}, {vr(q)}, {'0' if k == 0 else vr(D+4*sg)}")
                l.append(f"v_mfma_f32_16x16x32_bf16 {vr(D+8+4*sg)}, {ar(aC0)}, {vr(q)}, {'0' if k == 0 else vr(D+8+4*sg)}")
        l += [f"v_cvt_pk_bf16_f32 v{V}, v{D}, v{D+1}", f"v_cvt_pk_bf16_f32 v{V+1}, v{D+2}, v{D+3}",
              f"v_cvt_pk_bf16_f32 v{V+2}, v{D+4}, v{D+5}", f"v_cvt_pk_bf16_f32 v{V+3}, v{D+6}, v{D+7}",
              f"v_permlane16_swap_b32 v{D+8}, v{D+12}",
              f"v_permlane16_swap_b32 v{V}, v{V+2}", f"v_permlane16_swap_b32 v{V+1}, v{V+3}",
              I(f"buffer_store_dword v{D+8}, v{vZST}, {srd(S_WS)}, s{sZ} offen sc1", tag="kv", cost=8),
              I(f"buffer_store_dwordx4 {vr(V)}, v{vKVST}, {srd(S_WS)}, s{sKV} offen sc1", tag="kv", cost=8)]
        return l

    def b_qepi(self):
        l = self.feat_head(ACX)
        T0, T1 = TMP + 56, TMP + 57
        l += [f"v_bfe_u32 v{T0}, v{vL}, 2, 1", f"v_lshrrev_b32 v{T1}, 5, v{vL}", f"v_xor_b32 v{T0}, v{T0}, v{T1}",
              f"v_bfe_u32 v{T1}, v{vL}, 4, 1", f"v_or_b32 v{T0}, v{T0}, v{T1}",
              f"v_bfe_u32 v{T1}, v{vL}, 3, 1", f"v_lshlrev_b32 v{T1}, 1, v{T1}", f"v_bfe_u32 v{vT}, v{vL}, 1, 1", f"v_or_b32 v{T1}, v{T1}, v{vT}",
              f"v_lshl_or_b32 v{T0}, v{T0}, 2, v{T1}",
              f"v_and_b32 v{T1}, 1, v{vL}", f"v_lshlrev_b32 v{T1}, 4, v{T1}", f"v_lshlrev_b32 v{T1}, v{T1}, s{sP}"]
        for k in range(4):
            l += [Atom([f"v_cmp_eq_u32 vcc, {k}, v{T0}", f"v_cndmask_b32 v{vT}, 0, v{T1}, vcc", f"v_accvgpr_write_b32 a{aC0+k}, v{vT}"])]
        l += [f"v_lshrrev_b32 v{T0}, 4, v{vL}", f"v_mov_b32 v{T1}, s{sP}",
              Atom([f"v_cmp_eq_u32 vcc, 1, v{T0}", f"v_cndmask_b32 v{vT}, 0, v{T1}, vcc", f"v_accvgpr_write_b32 a{aC1}, v{vT}"])]
        l += [f"v_accvgpr_write_b32 a{aC1+k}, 0" for k in range(1, 4)]
        l += [f"v_and_b32 v{vT}, 31, v{vL}", f"v_lshlrev_b32 v{vZLD}, 2, v{vT}", f"v_lshrrev_b32 v{vT}, 5, v{vL}",
              f"v_lshl_add_u32 v{vZLD}, v{vT}, 10, v{vZLD}", f"v_add_u32 v{vKVT}, {KVT_L}, v{vL16}"]
        for t, D in ((0, TMP), (1, ACX)):
            body, post = self.softmax(D, [ACY + 16 * t + 4 * k for k in range(4)])
            l += body
            for q in post: l += q
        return l

    def b_gather_loads(self):
        l = []
        for k in range(8):
            l.append(I(f"buffer_load_dword v{ACX+16+k}, v{vZLD}, {srd(S_WS)}, s{sZ} offen offset:{k*128} sc1", cost=8))
        for p in range(16):
            ld = I(f"buffer_load_dwordx4 {vr(TMP+4*p)}, v{vL16}, {srd(S_WS)}, s{sTG} offen offset:{(p&3)*1024} sc1", cost=8)
            l.append(Atom([f"s_add_u32 s{sTG}, s{sKV}, {p*1024}", ld]) if p % 4 == 0 else ld)
        return l

    def b_gather_sum(self):
        Z, AZ = ACX + 16, ACX + 24
        l = [f"v_add_f32 v{Z+2*k}, v{Z+2*k}, v{Z+2*k+1}" for k in range(4)]
        l += [f"v_add_f32 v{Z}, v{Z}, v{Z+2}", f"v_add_f32 v{Z+4}, v{Z+4}, v{Z+6}", f"v_add_f32 v{Z}, v{Z}, v{Z+4}", f"v_mov_b32 v{Z+1}, v{Z}"]
        l += [f"v_mov_b32 v{AZ+k}, 0" for k in range(1, 4)]
        l += [f"v_permlane32_swap_b32 v{Z}, v{Z+1}", f"v_add_f32 v{Z}, v{Z}, v{Z+1}", f"v_cvt_pk_bf16_f32 v{AZ}, v{Z}, v{AZ+1}"]
        for p in range(16):
            l.append(f"v_mfma_f32_32x32x16_bf16 {vr(ACX,16)}, {vr(TMP+4*p)}, {ar(aC0)}, {'0' if p == 0 else vr(ACX,16)}")
        l.append(f"v_mfma_f32_32x32x16_bf16 {vr(ACX,16)}, {vr(AZ)}, {ar(aC1)}, {vr(ACX,16)}")
        l.append(f"v_lshl_add_u32 v{vT}, s{sW}, 11, v{vKVT}")
        l += [f"v_cvt_pk_bf16_f32 v{TMP+k}, v{ACX+2*k}, v{ACX+2*k+1}" for k in range(8)]
        l += [f"ds_write_b128 v{vT}, {vr(TMP)}", f"ds_write_b128 v{vT}, {vr(TMP+4)} offset:1024", WaitLGKM0(), "s_barrier"]
        return l

    def b_o(self):
        KT, W, O = TMP + 8, TMP + 40, TMP + 48
        l = [f"ds_read_b128 {vr(KT+4*k)}, v{vKVT} offset:{k*1024}" for k in range(8)]
        def mm(hd):
            D = ACX + 16 * (hd & 1)
            return [f"v_mfma_f32_32x32x16_bf16 {vr(D,16)}, {vr(KT+8*hd)}, {vr(ACY+8*hd)}, 0",
                    f"v_mfma_f32_32x32x16_bf16 {vr(D,16)}, {vr(KT+8*hd+4)}, {vr(ACY+8*hd+4)}, {vr(D,16)}"]
        def fin(hd):
            D = ACX + 16 * (hd & 1); o = O + 4 * hd
            q = [f"v_add_f32 v{W}, 0x358637bd, v{D+8}", f"v_rcp_f32 v{W}, v{W}", f"v_mul_f32 v{W}, v{W}, v{vG}"]
            q += [f"v_mul_f32 v{D+k}, v{W}, v{D+k}" for k in range(8)]
            q += [f"v_cvt_pk_bf16_f32 v{o+k}, v{D+2*k}, v{D+2*k+1}" for k in range(4)]
            q.append(Atom([f"s_add_u32 s{sTS}, s{sAF4}, {28*1024}",
                           I(f"buffer_store_dwordx4 {vr(o)}, v{vL16}, {srd(S_WS)}, s{sTS} offen offset:{hd*1024} sc1", tag="o", cost=8)]))
            return q
        l += mm(0) + mm(1) + fin(0) + mm(2) + fin(1) + mm(3) + fin(2) + fin(3)
        return l

    def a_load(self, j):
        l = []
        for rt in range(2):
            l.append(I(f"buffer_load_dwordx4 {ar(self.a_slot(j)+4*rt)}, v{vL16+rt}, {srd(S_WS)}, s{sTA} offen offset:{(j&3)*1024} sc1", cost=8))
        if j % 4 == 0: l[0] = Atom([f"s_add_u32 s{sTA}, s{sAFLD}, {j*1024}", l[0]])
        return l

    def final(self):
        l = [WaitLGKM0(), "s_barrier"]
        A0, A1 = 4, 5
        l += [f"v_and_b32 v{vT}, 31, v{vL}", f"s_movk_i32 s{sT1}, {RED_STRIDE}", f"v_mul_u32_u24 v{A0}, s{sT1}, v{vT}",
              f"v_lshrrev_b32 v{vT}, 5, v{vL}", f"v_lshl_add_u32 v{A0}, v{vT}, 4, v{A0}",
              f"s_mul_i32 s{sT2}, s{sW}, {RED_PART}", f"v_add_u32 v{A0}, s{sT2}, v{A0}",
              f"v_lshrrev_b32 v{vT}, 3, v{vL}", f"v_lshl_add_u32 v{vT}, s{sW}, 4, v{vT}", f"v_mul_u32_u24 v{A1}, s{sT1}, v{vT}",
              f"v_and_b32 v{vT}, 7, v{vL}", f"v_lshl_add_u32 v{A1}, v{vT}, 5, v{A1}",
              f"v_lshlrev_b32 v6, 4, v{vT}", f"v_lshrrev_b32 v{vT}, 3, v{vL}", f"v_lshl_add_u32 v6, v{vT}, 10, v6",
              f"s_add_u32 s{sT2}, s{sOUT}, 8192"]
        for rt in range(2):
            for t in range(2):
                for q in range(4):
                    l.append(f"ds_write_b128 v{A0}, {vr(AC2+16*(2*rt+t)+4*q)} offset:{rt*32*RED_STRIDE + t*128 + q*32}")
        l += [WaitLGKM0(), "s_barrier"]
        for p in range(2):
            for hf in range(2):
                for w in range(4):
                    l.append(f"ds_read_b128 {vr(TMP+32*p+16*hf+4*w)}, v{A1} offset:{w*RED_PART + p*8*RED_STRIDE + hf*16}")
        for p in range(2):
            for hf in range(2):
                b = TMP + 32 * p + 16 * hf
                l += [f"v_add_f32 v{b+k}, v{b+k}, v{b+4+k}" for k in range(4)]
                l += [f"v_add_f32 v{b+8+k}, v{b+8+k}, v{b+12+k}" for k in range(4)]
                l += [f"v_add_f32 v{b+k}, v{b+k}, v{b+8+k}" for k in range(4)]
                l += [f"v_cvt_pk_bf16_f32 v{8+4*p+2*hf+k}, v{b+2*k}, v{b+2*k+1}" for k in range(2)]
            l.append(f"buffer_store_dwordx4 {vr(8+4*p)}, v6, {srd(S_OUT)}, s{sOUT if p == 0 else sT2} offen {self.cfg.out_flags}".rstrip())
        return l

    def setup(self):
        A = self.typ == "A"
        st1, st2 = (3072, 3584) if A else (3584, 3072)
        l = []
        if A: l += [f"s_lshl_b32 s{sT1}, s{sHG}, 7", f"s_add_u32 s{sT1}, s{sT1}, 1024"]
        else: l += [f"s_lshl_b32 s{sT1}, s{sHG}, 8", f"s_add_u32 s{sT1}, s{sT1}, 1536"]
        l += [f"s_mul_i32 s{sT2}, s{sW}, {16*st1}", f"s_add_u32 s{sBLK[0]}, s{sT1}, s{sT2}",
              f"s_add_u32 s{sBLK[1]}, s{sBLK[0]}, s{sT2}", f"s_add_u32 s{sBLK[1]}, s{sBLK[1]}, {1024 if A else 128}",
              f"s_movk_i32 s{sT2}, {st1}", f"v_mad_u32_u24 v{vWG1}, v62, s{sT2}, v63"]
        l += [f"v_add_u32 v{vWG1+i}, {i*(8*st1-1024)}, v{vWG1}" for i in range(1, 4)]
        first = [j for j in self.order if self.avail[j] == 0]
        seq = []
        for j in first:
            seq.append(j)
            if j[0] == "x" and int(j[1:]) % 2 == 1 and f"s{int(j[1:])-1}" in first: seq.append(f"s{j[1:]}")
        late = [f"s{a}" for a in range(1, 8, 2) if f"s{a-1}" in first and f"s{a}" not in seq]
        self.first = seq + late
        l += self.dma_job(seq[0]) + self.dma_job(seq[1])
        l += [f"s_lshl_b32 s{sT1}, s{sW}, 8", f"s_add_u32 m0, s{sT1}, {GATE_L}", "s_mov_b64 exec, 0xffff",
              I(f"buffer_load_dwordx4 v{vL16}, {srd(S_GATE)}, s{sT1} offen lds", tag="misc"),
              f"s_lshl_b32 s{sT1}, s{sW}, 9", f"s_add_u32 m0, s{sT1}, {WPHI_L}", f"s_lshl_b32 s{sT2}, s{sHG}, 11", f"s_add_u32 s{sT1}, s{sT1}, s{sT2}",
              "s_mov_b32 exec_lo, -1",
              I(f"buffer_load_dwordx4 v{vL16}, {srd(S_WPHI)}, s{sT1} offen lds", tag="misc"), "s_mov_b64 exec, -1",
              f"v_and_b32 v{vBO}, 31, v{vL}", f"v_lshlrev_b32 v{vBO}, 1, v{vBO}", f"s_and_b32 s{sP}, s{sHG}, 1"]
        if A:
            l += [f"s_mul_i32 s{sT1}, s{sHG}, 192", f"s_lshl_b32 s{sT2}, s{sP}, 6", f"s_add_u32 s{sBLK[2]}, s{sT1}, s{sT2}",
                  f"s_xor_b32 s{sT2}, s{sP}, 1", f"s_lshl_b32 s{sT2}, s{sT2}, 7", f"s_add_u32 s{sBLK[3]}, s{sT1}, s{sT2}",
                  f"buffer_load_ushort a{aBIAS}, v{vBO}, {srd(S_B1)}, s{sBLK[2]} offen",
                  f"buffer_load_ushort a{aBIAS+2}, v{vBO}, {srd(S_B1)}, s{sBLK[2]} offen offset:64",
                  f"buffer_load_ushort a{aBIAS+4}, v{vBO}, {srd(S_B1)}, s{sBLK[3]} offen",
                  f"v_accvgpr_write_b32 a{aBIAS+6}, 0"]
        else:
            l += [f"s_lshl_b32 s{sT1}, s{sHG}, 8", f"s_add_u32 s{sT1}, s{sT1}, 1536"]
            l += [f"buffer_load_ushort a{aBIAS+2*t}, v{vBO}, {srd(S_B1)}, s{sT1} offen offset:{64*t}" for t in range(4)]
            l += [f"s_lshl_b32 s{sBLK[2]}, s{sHG}, 7"]
        for j in self.first[2:]: l += self.dma_job(j)
        l += [f"s_mul_i32 s{sT2}, s{sW}, {32*st2}", f"s_add_u32 s{sBLK[2]}, s{sBLK[2]}, s{sT2}",
              f"s_movk_i32 s{sT2}, {st2}", f"v_mad_u32_u24 v{vWG2}, v62, s{sT2}, v63"]
        l += [f"v_add_u32 v{vWG2+i}, {i*(8*st2-1024)}, v{vWG2}" for i in range(1, 4)]
        l += [f"v_lshl_add_u32 v{vW2G}, v62, 10, v63"] + [f"v_add_u32 v{vW2G+i}, {i*7168}, v{vW2G}" for i in range(1, 4)]
        if A:
            l += [f"s_mul_i32 s{sT2}, s{sW}, {64*3584}", f"s_add_u32 s{sBLK[3]}, s{sBLK[3]}, s{sT2}",
                  f"v_lshrrev_b32 v{vT}, 2, v{vL}", f"v_mul_u32_u24 v{vWGH}, 3584, v{vT}", f"v_and_b32 v{vT}, 3, v{vL}",
                  f"v_lshl_add_u32 v{vWGH}, v{vT}, 4, v{vWGH}"]
            l += [f"v_add_u32 v{vWGH+i}, {i*(16*3584-1024)}, v{vWGH}" for i in range(1, 4)]
        h, r, g16, c8 = TMP + 16, TMP + 17, TMP + 18, TMP + 19
        l += [f"v_lshrrev_b32 v{h}, 5, v{vL}", f"v_bfe_u32 v{r}, v{vL}, 2, 2", f"v_and_b32 v{g16}, 16, v{vL}", f"v_and_b32 v{c8}, 3, v{vL}",
              f"v_lshlrev_b32 v{c8}, 3, v{c8}", f"v_lshl_or_b32 v{c8}, v{g16}, 1, v{c8}",
              f"v_lshrrev_b32 v{vT}, 1, v{r}", f"v_lshl_or_b32 v{g16}, v{vT}, 6, v{c8}",
              f"v_lshl_add_u32 v{g16}, v{r}, 7, v{g16}",
              f"v_lshl_add_u32 v{vWR}, v{h}, 10, v{g16}", f"v_xor_b32 v{vWR+1}, 64, v{vWR}",
              f"v_lshl_add_u32 v{vW2R}, v{h}, 9, v{g16}", f"v_add_u32 v{vW2R}, s{sL4K}, v{vW2R}", f"v_xor_b32 v{vW2R+1}, 64, v{vW2R}"]
        for wn in (1, 2):
            l += [f"v_add_u32 v{vWR+2*wn+t}, {wn<<16}, v{vWR+t}" for t in range(2)]
            l += [f"v_add_u32 v{vW2R+2*wn+t}, {wn<<16}, v{vW2R+t}" for t in range(2)]
        if A:
            l += [f"v_lshl_add_u32 v{vHR}, v{r}, 6, v{c8}", f"v_lshl_add_u32 v{vHR}, v{h}, 9, v{vHR}",
                  f"v_add_u32 v{vHR+1}, 0x10000, v{vHR}", f"v_add_u32 v{vHR+2}, 0x20000, v{vHR}"]
        l += [f"v_bfe_u32 v{vT}, v{vL}, 1, 3", f"v_xor_b32 v{vT}, v{vT}, v{h}", f"v_lshlrev_b32 v{vT}, 4, v{vT}",
              f"v_and_b32 v{g16}, 31, v{vL}", f"v_lshl_add_u32 v{vT}, v{g16}, 7, v{vT}", f"v_add_u32 v{vXR}, s{sL4K}, v{vT}"]
        l += [f"v_xor_b32 v{vXR+u}, {32*u}, v{vXR}" for u in range(1, 4)]
        for wn in (1, 2): l += [f"v_add_u32 v{vXR+4*wn+u}, {wn<<16}, v{vXR+u}" for u in range(4)]
        l += [f"v_lshlrev_b32 v{vGR}, 4, v{h}", f"v_add_u32 v{vGR}, {GATE_L}, v{vGR}",
              f"v_lshl_add_u32 v{vT}, v{h}, 2, v{r}", f"v_lshlrev_b32 v{vT}, 5, v{vT}", f"v_and_b32 v{g16}, 3, v{vL}", f"v_lshl_add_u32 v{vT}, v{g16}, 3, v{vT}",
              f"v_and_b32 v{g16}, 16, v{vL}", f"v_lshl_add_u32 v{vT}, v{g16}, 5, v{vT}", f"v_add_u32 v{vWPR}, {WPHI_L}, v{vT}",
              f"v_mov_b32 v{vT}, 0x3f80", f"v_cmp_eq_u32 vcc, 0, v{h}", f"v_cndmask_b32 v{vT}, 0, v{vT}, vcc", f"v_accvgpr_write_b32 a{aONE}, v{vT}"]
        l += [f"v_accvgpr_write_b32 a{k}, 0" for k in (aONE + 1, aONE + 2, aONE + 3, aBIAS + 1, aBIAS + 3, aBIAS + 5, aBIAS + 7, aBIAS + 8, aBIAS + 9)]
        l += [f"s_lshl_b32 s{sT1}, s{sRB}, 2", f"s_add_u32 s{sT1}, s{sT1}, s{sW}", f"s_mul_i32 s{sT1}, s{sT1}, {RT_STRIDE}",
              f"s_lshr_b32 s{sT2}, s{sHG}, 1", f"s_mul_i32 s{sT2}, s{sT2}, {36*1024}", f"s_add_u32 s{sT1}, s{sT1}, s{sT2}", f"s_add_u32 s{sT1}, s{sT1}, {AF}",
              f"s_lshl_b32 s{sT2}, s{sP}, 12", f"s_add_u32 s{sAF4}, s{sT1}, s{sT2}", f"s_lshl_b32 s{sT2}, s{sP}, 11", f"s_add_u32 s{sAF2}, s{sT1}, s{sT2}",
              f"s_mul_i32 s{sT1}, s{sRB2}, {2*RT_STRIDE}", f"s_mul_i32 s{sT2}, s{sW}, {36*1024}", f"s_add_u32 s{sT1}, s{sT1}, s{sT2}", f"s_add_u32 s{sAFLD}, s{sT1}, {AF}",
              f"s_lshl_b32 s{sT1}, s{sCB}, 7", f"s_lshl_b32 s{sT2}, s{sW}, 18", f"s_add_u32 s{sW2B}, s{sT1}, s{sT2}", f"s_add_u32 s{sW2B}, s{sW2B}, {768*1024}",
              f"s_mul_i32 s{sT2}, s{sW}, {192*1024}", f"s_add_u32 s{sW2A}, s{sT1}, s{sT2}", f"s_lshl_b32 s{sT2}, s{sW}, 17", f"s_add_u32 s{sWO}, s{sT1}, s{sT2}",
              f"s_lshl_b32 s{sT2}, s{sRB2}, 16", f"s_add_u32 s{sOUT}, s{sT1}, s{sT2}", f"s_lshl_b32 s{sT2}, s{sW}, 14", f"s_add_u32 s{sOUT}, s{sOUT}, s{sT2}",
              f"s_lshl_b32 s{sT1}, s{sHG}, 2", f"s_add_u32 s{sT1}, s{sT1}, s{sW}", f"s_lshl_b32 s{sT1}, s{sT1}, 4"]
        if A: l += [f"s_add_u32 s{sT1}, s{sT1}, s{sRB}"]
        l += [f"s_lshl_b32 s{sKV}, s{sT1}, 10", f"s_add_u32 s{sKV}, s{sKV}, {KVP}", f"s_lshl_b32 s{sZ}, s{sT1}, 7", f"s_add_u32 s{sZ}, s{sZ}, {ZP}",
              f"v_add_u32 v{vL16B}, {RT_STRIDE}, v{vL16}",
              f"s_lshl_b32 s{sT1}, s{sRB}, 4", f"s_add_u32 s{sT1}, s{sT1}, s{sCG}", f"s_lshl_b32 s{sT1}, s{sT1}, 5", f"s_add_u32 s{sT1}, s{sT1}, s{sW}",
              f"s_lshl_b32 s{sT1}, s{sT1}, 2", f"v_mov_b32 v{vFA}, s{sT1}",
              f"s_lshr_b32 s{sT1}, s{sRB2}, 1", f"s_lshl_b32 s{sT1}, s{sT1}, 2", f"s_add_u32 s{sT1}, s{sT1}, s{sW}", f"s_lshl_b32 s{sT1}, s{sT1}, 9",
              f"s_and_b32 s{sT2}, s{sRB2}, 1", f"s_lshl_b32 s{sT2}, s{sT2}, 3", f"s_add_u32 s{sT1}, s{sT1}, s{sT2}",
              f"v_bfe_u32 v{vT}, v{vL}, 1, 2", f"v_lshlrev_b32 v{vPA}, 7, v{vT}", f"v_and_b32 v{vT}, 1, v{vL}", f"v_lshl_add_u32 v{vPA}, v{vT}, 2, v{vPA}",
              f"v_add_u32 v{vPA}, s{sT1}, v{vPA}"]
        if not A:
            l += [f"s_lshl_b32 s{sT1}, s{sHG}, 8", f"s_lshl_b32 s{sT2}, s{sW}, 2", f"s_add_u32 s{sT1}, s{sT1}, s{sT2}",
                  f"v_and_b32 v{vT}, 15, v{vL}", f"v_lshl_add_u32 v{vKPA}, v{vT}, 11, s{sT1}"]
        l += [f"s_mov_b32 s{sP}, {'0x3f803f80' if A else '0x3f80'}", f"s_mov_b32 s{sLOG}, {LOG2E}", f"s_mov_b32 s{sSPIN}, 0"]
        return l

    def leader(self, p):
        lab = self.typ
        q = Prog()
        V, A_, B_ = TMP + 32, TMP + 20, TMP + 21
        q.add([f"L_lead_{lab}:", f"v_lshlrev_b32 v{TMP+22}, 2, v{vL}", f"v_add_u32 v{TMP+22}, {BITMAP_L}, v{TMP+22}", f"v_mov_b32 v{vT}, 0",
               f"ds_write_b32 v{TMP+22}, v{vT}", f"v_mov_b32 v{TMP+23}, 1", f"s_mov_b32 s{sT3}, {BITMAP_L}", f"s_waitcnt vmcnt({p.vm_n-1})"])
        for k in range(16):
            q.add([f"v_bfe_u32 v{B_}, v{V+k}, 3, 11", f"v_lshrrev_b32 v{A_}, 5, v{B_}", f"v_lshl_add_u32 v{A_}, v{A_}, 2, s{sT3}",
                   f"v_lshlrev_b32 v{B_}, v{B_}, v{TMP+23}", f"ds_or_b32 v{A_}, v{B_}"])
        q.add([f"ds_read_b32 v{vT}, v{TMP+22}", f"v_not_b32 v{vT}, v{vT}", f"v_cmp_ne_u32 vcc, 0, v{vT}", f"s_ff1_i32_b64 s{sT1}, vcc",
               f"v_readlane_b32 s{sT2}, v{vT}, s{sT1}", f"s_ff1_i32_b32 s{sT2}, s{sT2}", f"s_lshl_b32 s{sT1}, s{sT1}, 5", f"s_add_u32 s{sT1}, s{sT1}, s{sT2}",
               f"s_lshl_b32 s{sT1}, s{sT1}, 3", f"s_or_b32 s{sT1}, s{sT1}, 0x80000000", f"v_mov_b32 v{vT}, s{sT1}", "s_mov_b64 exec, 1",
               f"buffer_store_dword v{vT}, off, {srd(S_DBG)}, 0 sc1", "s_mov_b64 exec, -1", "s_nop 1", f"s_branch L_leadback_{lab}"])
        self.side.append(q.text())

    def body(self, p):
        c, A = self.cfg, self.typ == "A"
        self.plan(); self.build_steps()
        p.add(self.setup())
        p.add([f"s_cmp_eq_u32 s{sLEAD}, 0", f"s_cbranch_scc1 L_lead_{self.typ}", f"L_leadback_{self.typ}:"])
        self.leader(p)
        steps, P1 = self.steps, self.p1
        prim, gap_at, g = [], [], 0
        first_of = {name: f for name, f, n, jobs in self.stages}
        jobs_of = {name: jobs for name, f, n, jobs in self.stages}
        nxt = 0
        extra = {}
        def at(it, items): extra.setdefault(it, []).extend(items)
        seg_need = [(0, 1, "0xcc", "b0"), (8, 2, "0xcc", "b1"), (16, 2, "0x33", "a0"), (24, 3, "0x33", "a1"), (28, 3, "0xcc", "o")]
        a_it = {}
        for j0, need, mask, nm in seg_need:
            chk = P1 + getattr(c, "chk_" + nm)
            at(chk - c.poll_lead * (1 if chk - c.poll_lead >= P1 else 2), [self.poll_load(vPA)])
            at(chk, [self.poll_check(vPA, need, mask, nm)] + self.stamp("chk_" + nm))
            a_it[j0] = chk
        for it in range(self.nsteps):
            gap_at.append(g)
            if it in self.bar:
                nm = self.bar[it]
                for j in jobs_of.get(nm, []): prim.append(WaitVM(j))
                if nm == "c0": prim.append(WaitVM("misc"))
                if (nm[0] == "c" and nm != "c0") or nm == "b1_0" or (A and nm == "b2_1"): prim.append(WaitLGKM0())
                prim.append("s_barrier")
                prim += self.stamp(nm)
                if nm == "c1":
                    for t in range(2):
                        prim += [f"ds_read_b64_tr_b16 {ar(aWPHI+4*t,2)}, v{vWPR} offset:{t*1024}", f"ds_read_b64_tr_b16 {ar(aWPHI+4*t+2,2)}, v{vWPR} offset:{t*1024+256}"]
            prim += extra.get(it, [])
            while nxt < self.nsteps and self.rd_it[nxt] <= it:
                if steps[nxt].p2 and first_of[steps[nxt].stage] == nxt: prim.append(WaitVM(steps[nxt].stage))
                prim += steps[nxt].reads; nxt += 1
            prim += steps[it].mfmas; g += len(steps[it].mfmas)
        gap_at.append(g)
        G = lambda it: gap_at[it]
        fill = []
        cur = 0
        self.report = []
        for j in self.order:
            if j in self.first or j in ("P0", "P1", "V"): continue
            g0 = max(cur, G(self.avail[j]))
            pace = c.pace if g0 < G(P1) else c.pace2
            if self.avail[j] < 32: pace = 3
            items = self.dma_job(j)
            if j[0] == "s": items += self.dma_job(f"s{int(j[1:])+1}")
            user = [f for name, f, n, jobs in self.stages if j in jobs][0]
            dead = G(self.rd_it[user]) - 1
            g1 = min(g0 + pace - 1, dead)
            assert g0 <= dead, (j, g0, dead)
            fill.append((items, g0, g1)); cur = g1 + 1
            self.report.append((j, self.chunk[j], g0, dead - g1))
        cur = 0
        for j in range(36):
            seg = max(j0 for j0 in a_it if j0 <= j)
            it = max(P1 + j - c.la_a, a_it[seg])
            if j >= 7 and j < 23: it = max(it, P1)
            if j >= 23: it = max(it, P1 + j - 23 + 1)
            g0 = max(cur, G(it))
            dead = G(P1 + j) - 1
            g1 = min(g0 + (1 if (g0 >= G(P1)) else 2), dead)
            g0 = min(g0, g1)
            fill.append((self.a_load(j), g0, g1)); cur = g1 + 1 if seg != 28 else g1
        tagld = I(f"buffer_load_dword v{vTG}, off, {srd(S_DBG)}, 0 sc1", cost=8)
        bl = lambda b: 32 * b
        if A:
            fill.append(([tagld], G(40), G(40)))
            fill.append((self.a_block1(), G(32), G(64) - 1))
            bar21 = [b for b in self.bar if self.bar[b] == "b2_1"][0]
            fill.append((self.a_vepi(), G(64) + 3, G(bar21) - 1))
            fill.append(([self.tag_check()] + self.a_kv(), G(bar21), G(bar21) + 15))
            fill.append((self.flag(1, "kv") + self.stamp("kvflag"), G(bar21) + 40, G(bar21) + 40))
            e = self.h_epi(ACX, sAF4, 16, 0, "h0") + self.h_epi(ACX + 16, sAF4, 16, 1, "h0")
            fill.append((e, G(96) + 2, G(P1) + 8))
            fill.append((self.h_epi(ACY, sAF2, 24, 0, "h1"), G(P1) + 9, G(P1) + 28))
            fill.append((self.flag(2, "h0"), G(P1) + 24, G(P1) + 24))
            fill.append((self.flag(3, "h1"), G(P1) + 40, G(P1) + 40))
            assert G(P1) + 24 < G(P1 + c.chk_a0) and G(P1) + 40 < G(P1 + c.chk_a1)
        else:
            fill.append(([tagld], G(40), G(40)))
            e = self.gate_fin() + self.h_epi(ACX, sAF4, 0, 0, "h0") + self.h_epi(ACX + 16, sAF4, 0, 1, "h0")
            fill.append((e, G(32) + 2, G(64) - 8))
            fill.append(([self.tag_check()] + self.flag(1, "h0"), G(64) + 12, G(64) + 12))
            e = self.h_epi(ACY, sAF4, 8, 0, "h1") + self.h_epi(ACY + 16, sAF4, 8, 1, "h1")
            fill.append((e, G(64) + 2, G(96) - 8))
            fill.append((self.flag(2, "h1"), G(96) + 12, G(96) + 12))
            assert G(96) + 12 < G(P1 + c.chk_b1) and k2o(c) + 12 < c.chk_o
            kp = P1 + c.kv_poll
            q = self.b_qepi()
            fill.append((q, G(P1) + 2, G(kp + c.poll_lead) - 1))
            fill.append(([I(f"buffer_load_dword v{vTG}, v{vKPA}, {srd(S_WS)}, 0 offen sc1", cost=8)], G(kp), G(kp)))
            k2 = kp + c.poll_lead
            chk = self.poll_check_kv()
            fill.append(([chk] + self.stamp("chk_kv") + self.b_gather_loads(), G(k2), G(k2 + 2) - 1))
            fill.append((self.b_gather_sum() + self.b_o() + self.stamp("ostore"), G(k2 + 5), G(k2 + 9) - 1))
            fill.append((self.flag(3, "o") + self.stamp("oflag"), G(k2 + 12), G(k2 + 12)))
        p.add(merge(prim, fill))
        p.add(self.stamp("mend"))
        p.add(self.final())
        if c.diag:
            p.add(["s_waitcnt vmcnt(0)"] + self.stamp("end"))
            p.add([f"s_lshl_b32 s{sT1}, s2, 2", f"s_add_u32 s{sT1}, s{sT1}, s{sW}", f"s_lshl_b32 s{sT1}, s{sT1}, 6", f"s_add_u32 s{sT1}, s{sT1}, {STAMP}",
                   f"v_mov_b32 v{vT}, s{sT1}", "s_mov_b64 exec, 1"])
            p.add([f"v_mov_b32 v4, s48", f"buffer_store_dword v4, v{vT}, {srd(S_WS)}, 0 offen"])
            for k in range(self.nstamp):
                p.add([f"v_mov_b32 v4, s{sSTAMP+2*k}", f"buffer_store_dword v4, v{vT}, {srd(S_WS)}, 0 offen offset:{4*k+4}"])
            p.add([f"v_mov_b32 v4, s{sSPIN}", f"buffer_store_dword v4, v{vT}, {srd(S_WS)}, 0 offen offset:60"])
        p.add("s_endpgm")

    def poll_check_kv(self):
        lab = "B_kv"
        chk = [f"v_subrev_u32 v{vPT}, s{sT1}, v{vTG}", f"v_cmp_gt_u32 vcc, 7, v{vPT}", f"s_andn2_b32 s{sT2}, 0xffff, vcc_lo"]
        def side(p):
            q = Prog()
            q.add([f"L_retry_{lab}:", f"s_add_u32 s{sSPIN}, s{sSPIN}, 1", f"s_cmp_gt_u32 s{sSPIN}, 0x40000", "s_cbranch_scc1 L_end",
                   f"buffer_load_dword v{vTG}, v{vKPA}, {srd(S_WS)}, 0 offen sc1", "s_waitcnt vmcnt(0)"])
            q.vm_done = q.vm_n
            q.add(chk + [f"s_cbranch_scc1 L_retry_{lab}", "s_nop 1", f"s_branch L_back_{lab}"])
            self.side.append(q.text())
        return Atom([f"s_add_u32 s{sT1}, s{sTAG}, 1"] + chk + [f"s_cbranch_scc1 L_retry_{lab}", f"L_back_{lab}:", Call(side)])


def prologue(cfg):
    p = Prog()
    if cfg.diag: p.add(["s_memrealtime s[86:87]"])
    p.add(["s_cmp_ge_u32 s2, 256", "s_cbranch_scc1 L_end"])
    for s, off in ((S_X, 0), (S_WQ, 8), (S_W1, 40), (S_WS, 88), (S_GATE, 64), (S_WPHI, 16), (S_B1, 48)):
        p.add(f"s_load_dwordx2 s[{s}:{s+1}], s[0:1], {off}")
    p.add(["s_getpc_b64 s[48:49]", f"v_lshrrev_b32 v{vT}, 6, v0", f"v_and_b32 v{vL}, 63, v0", f"s_lshr_b32 s{sT1}, s2, 3",
           f"v_readfirstlane_b32 s{sW}, v{vT}", f"v_lshlrev_b32 v{vL16}, 4, v{vL}", "s_and_b32 s48, s48, 0xffffff00",
           f"s_lshl2_add_u32 s{sT2}, s{sT1}, s{sW}", f"s_and_b32 s{sT2}, s{sT2}, 63", f"s_min_u32 s{sT2}, s{sT2}, {cfg.code_kb-1}",
           f"s_lshl_b32 s{sT2}, s{sT2}, 10", f"s_add_u32 s48, s48, s{sT2}", "s_addc_u32 s49, s49, 0",
           f"v_mov_b32 v5, s49", f"v_add_co_u32 v4, vcc, s48, v{vL16}", "v_addc_co_u32 v5, vcc, 0, v5, vcc",
           f"global_load_dwordx4 {vr(TMP)}, v[4:5], off"])
    p.add([f"s_and_b32 s{sT2}, s2, 7",
           f"s_lshr_b32 s{sRB}, s{sT2}, 2", f"s_lshl_b32 s{sRB}, s{sRB}, 3", f"s_lshr_b32 s{sT3}, s{sT1}, 2", f"s_add_u32 s{sRB}, s{sRB}, s{sT3}",
           f"s_and_b32 s{sCG}, s{sT2}, 3", f"s_and_b32 s{sT3}, s{sT1}, 3", f"s_lshl2_add_u32 s{sCG}, s{sCG}, s{sT3}", f"s_lshr_b32 s{sHG}, s{sCG}, 1",
           f"s_lshr_b32 s{sT3}, s{sT1}, 3", f"s_lshl2_add_u32 s{sRB2}, s{sT2}, s{sT3}", f"s_and_b32 s{sCB}, s{sT1}, 7",
           f"s_lshl2_add_u32 s{sXO}, s{sRB}, s{sW}", f"s_lshl_b32 s{sXO}, s{sXO}, 15",
           f"s_lshl_b32 s{sL2K}, s{sW}, 11", f"s_lshl_b32 s{sL4K}, s{sW}, 12", f"s_or_b32 s{sLEAD}, s2, s{sW}"])
    sizes = {S_X: 2048*1024, S_WQ: 512*3072, S_W1: 512*3584, S_WS: WS_BYTES + (0x20000 if cfg.diag else 0), S_GATE: 1024, S_WPHI: 16384, S_B1: 3584,
             S_W2: 1792*1024, S_WO: 512*1024, S_OUT: 2048*1024, S_DBG: 256}
    for s in (S_X, S_WQ, S_W1, S_WS, S_GATE, S_WPHI, S_B1): p.add([f"s_mov_b32 s{s+2}, {sizes[s]}", f"s_mov_b32 s{s+3}, 0x20000"])
    p.add([f"v_lshrrev_b32 v62, 3, v{vL}", f"v_and_b32 v61, 7, v{vL}", f"v_lshrrev_b32 v{vT}, 4, v{vL}",
           f"v_xor_b32 v{vXG}, v61, v{vT}", f"v_lshlrev_b32 v{vXG}, 4, v{vXG}", f"v_lshl_add_u32 v{vXG}, v62, 10, v{vXG}",
           f"v_xor_b32 v{vXG+1}, 64, v{vXG}", f"v_add_u32 v{vXG+1}, 7168, v{vXG+1}", f"v_add_u32 v{vXG+2}, {2*7168}, v{vXG}", f"v_add_u32 v{vXG+3}, {2*7168}, v{vXG+1}",
           f"v_and_b32 v{vT}, 1, v{vT}", f"v_lshlrev_b32 v{vT}, 2, v{vT}", f"v_xor_b32 v63, v61, v{vT}", "v_lshlrev_b32 v63, 4, v63",
           "s_waitcnt lgkmcnt(0)"])
    if cfg.diag: p.add("s_mov_b32 s48, s86")
    for s, off in ((S_W2, 56), (S_WO, 24), (S_OUT, 72), (S_DBG, 80)):
        p.add([f"s_load_dwordx2 s[{s}:{s+1}], s[0:1], {off}", f"s_mov_b32 s{s+2}, {sizes[s]}", f"s_mov_b32 s{s+3}, 0x20000"])
    p.add([f"s_cmp_lg_u32 s{sLEAD}, 0", "s_cbranch_scc1 L_nolead", f"v_lshlrev_b32 v{vT}, 7, v{vL}"])
    for k in range(4):
        p.out += [f"    s_mov_b32 s{sT3}, {k*8192}", f"    buffer_load_dwordx4 {vr(TMP+32+4*k)}, v{vT}, {srd(S_WS)}, s{sT3} offen sc1"]
    p.add(["L_nolead:", f"s_bitcmp1_b32 s{sCG}, 0", "s_cbranch_scc1 L_typeB"])
    return p


def generate(cfg):
    side = []
    p0 = prologue(cfg)
    texts, info = [p0.text()], []
    for typ in ("A", "B"):
        p = p0.fork()
        g = Gen(typ, cfg, side)
        if typ == "B": p.add("L_typeB:")
        orig = g.setup
        g.setup = lambda o=orig: o() + ["s_waitcnt lgkmcnt(0)"]
        g.body(p)
        texts.append(p.text())
        info.append((typ, p.count, p.nops, p.issue, g.report, g.stamps))
    if cfg.diag: texts[0] = "; stamps A " + ",".join(info[0][5]) + "\n; stamps B " + ",".join(info[1][5]) + "\n" + texts[0]
    hdr = open(__file__.replace("gen.py", "header.txt")).read()
    s = hdr + f"; @launch grid=(256,1,1) block=(256,1,1) lds=163840\n"
    s += f'.amdgcn_target "amdgcn-amd-amdhsa--gfx950"\n.text\n.globl {KN}\n.p2align 8\n.type {KN},@function\n{KN}:\n'
    s += "\n".join(texts) + "\n" + "\n".join(side) + "\nL_end:\n    s_endpgm\n"
    s += f".if (. - {KN}) > {cfg.code_kb*1024}\n.error \"code_kb too small\"\n.endif\n"
    s += f".fill ({cfg.code_kb*1024} - (. - {KN})) / 4, 4, 0xbf800000\n    s_endpgm\n"
    s += f""".section .rodata,"a"
.p2align 6
.amdhsa_kernel {KN}
  .amdhsa_next_free_vgpr 512
  .amdhsa_next_free_sgpr 102
  .amdhsa_accum_offset 256
  .amdhsa_group_segment_fixed_size 0
  .amdhsa_kernarg_size 96
  .amdhsa_user_sgpr_count 2
  .amdhsa_user_sgpr_kernarg_segment_ptr 1
  .amdhsa_system_sgpr_workgroup_id_x 1
.end_amdhsa_kernel
"""
    return s, info


if __name__ == "__main__":
    cfg = Cfg()
    out = None
    for a in sys.argv[1:]:
        if "=" in a:
            k, v = a.split("=", 1)
            setattr(cfg, k, type(getattr(cfg, k))(int(v)) if not isinstance(getattr(cfg, k), str) else v)
        else: out = a
    s, info = generate(cfg)
    open(out or f"cdna_kernels/{NAME}.s", "w").write(s)
    for typ, cnt, nops, issue, rep, st in info:
        print(typ, cnt, "nops", nops, "issue", issue)
        print("   ", " ".join(f"{j}@{ch}:{g0}+{lead}" for j, ch, g0, lead in rep))
```

```python
import sys
from asmlib import *

NAME = "gated_mix__linear_kernel_hedgehog__dense_activation_mish__prompt"
KN = NAME + "_kernel"

FLAGS, ZP, KVP, AF = 0, 0x10000, 0x20000, 0x100000
RT_STRIDE = 144 * 1024
WS_BYTES = 0xA00000
STAMP = 0xA00000
CH = 16384
MISC = 9 * CH
GATE_L, WPHI_L, BITMAP_L, KVT_L, ZERO_L = MISC, MISC + 1024, MISC + 3072, MISC + 4096, MISC + 12288
RED_STRIDE = 272
RED_PART = 64 * RED_STRIDE
S_X, S_WQ, S_W1, S_W2, S_WO, S_WS, S_OUT, S_DBG, S_WPHI, S_B1, S_GATE = 4, 8, 12, 16, 20, 24, 28, 32, 36, 40, 44
sW, sRB, sCG, sHG, sRB2, sCB, sTAG, sXO = 50, 51, 52, 53, 54, 55, 56, 57
sBLK = [58, 59, 60, 61]
sL2K, sL4K, sAF4, sAF2, sAFLD, sW2B, sW2A, sWO, sKV, sZ, sOUT, sLOG = 62, 63, 64, 65, 66, 67, 68, 69, 70, 71, 72, 73
sLEAD, sP = 74, 75
sTD, sTS, sTA, sTG, sSPIN, sT1, sT2, sT3 = 76, 77, 78, 79, 80, 81, 82, 83
sSTAMP = 84
vL, vL16, vL16B, vT = 0, 1, 2, 3
vXG, vWG1, vWG2, vWGH, vW2G = 4, 8, 12, 16, 20
vWR, vW2R, vHR, vPT, vXR = 24, 30, 36, 39, 40
vKXW, vKXP, vKXV, vKVST, vZST, vZLD, vKVT = 40, 43, 44, 45, 46, 47, 48
vGR, vG, vC, vM2C, vPA, vKPA, vPD, vFA, vFV, vBO, vWPR, vTG = 52, 53, 54, 55, 56, 57, 58, 59, 60, 61, 62, 63
ACX, ACY, AC2, TMP = 64, 96, 128, 192
aX, aWF, aGF, aWPHI, aBIAS, aONE = 0, 128, 160, 168, 176, 186
aC0, aC1 = 160, 164
LOG2E = "0x3fb8aa3b"


def srd(n): return f"s[{n}:{n+3}]"
def vr(n, k=4): return f"v[{n}:{n+k-1}]"
def ar(n, k=4): return f"a[{n}:{n+k-1}]"
def win(base, stride, off): return base + stride * (off >> 16), off & 0xffff


class Cfg:
    diag = False
    cyc = False
    la_chase = 1
    la = 2
    pace = 8
    pace2 = 4
    la_a = 6
    poll_lead = 3
    chk_b0 = -6
    chk_b1 = 4
    chk_a0 = 11
    chk_a1 = 18
    chk_o = 26
    kv_poll = 3
    out_flags = ""
    pre = 3
    code_kb = 44
    stamps = "c0,b1_0,b2_0,end1,kvflag,chk_kv,oflag,chk_o,mend,end"


def k2o(c): return c.kv_poll + c.poll_lead


class Step:
    def __init__(self, reads, mfmas, stage, p2=False):
        self.reads, self.mfmas, self.stage, self.p2 = reads, mfmas, stage, p2


class Gen:
    def __init__(self, typ, cfg, side):
        self.typ, self.cfg, self.side = typ, cfg, side
        self.nstamp = 0; self.stamps = []

    def plan(self):
        c, A = self.cfg, self.typ == "A"
        stages = []
        for a in range(8): stages.append((f"c{a}", 4 * a, 4, [f"x{a}", f"s{a}"]))
        s = 32
        for b in (1, 2):
            for k in range(4): stages.append((f"b{b}_{k}", s, 8, [f"w{b}_{k}"])); s += 8
        if A:
            for k in range(2): stages.append((f"h{k}", s, 16, [f"w3_{k}"])); s += 16
        self.p1 = s
        for g in range(18): stages.append((f"g{g}", s + 2 * g, 2, [f"g{g}"]))
        self.nsteps = s + 36
        self.stages = stages
        self.la = lambda i: c.la_chase if i < 32 else c.la
        self.rd_it = [max(0, i - self.la(i)) for i in range(self.nsteps)]
        for i in range(1, self.nsteps): self.rd_it[i] = max(self.rd_it[i], self.rd_it[i - 1])
        self.bar = {}
        for name, f, n, jobs in stages:
            if f < self.p1: self.bar[self.rd_it[f]] = name
        self.bar_end = self.p1 + 1
        self.bar[self.bar_end] = "end1"
        bars = sorted(self.bar)
        def free_it(name, f, n):
            last = f + n - 1
            if f >= self.p1: return last + 1
            if f < 32: return min(b for b in bars if b > self.rd_it[last])
            return min(b for b in bars if b > last)
        order = []
        for a in range(8): order += [f"x{a}"] + ([f"s{a}"] if a % 2 == 0 else [])
        order += [f"w1_{k}" for k in range(4)]
        if A: order += ["P0", "P1"]
        order += [f"w2_{k}" for k in range(2)]
        if A: order += ["V"]
        order += [f"w2_{k}" for k in range(2, 4)]
        if A: order += ["w3_0", "w3_1"]
        order += [f"g{g}" for g in range(18)]
        rel = {}
        for name, f, n, jobs in stages:
            for j in jobs:
                if j.startswith("s"):
                    a = int(j[1:])
                    if a % 2: rel[f"s{a-1}"] = free_it(name, f, n)
                else: rel[j] = free_it(name, f, n)
        if A:
            kvfree = [b for b in bars if self.bar[b] == "b2_3"][0]
            rel["P0"] = rel["P1"] = rel["V"] = kvfree
        chunk, avail = {}, {}
        free = [(0, k) for k in range(9)]
        for j in order:
            free.sort()
            t, k = free.pop(0)
            chunk[j], avail[j] = k, t
            free.append((rel[j], k))
        for a in range(1, 8, 2): chunk[f"s{a}"], avail[f"s{a}"] = chunk[f"s{a-1}"], avail[f"s{a-1}"]
        if A: assert avail["P0"] <= 32 and avail["P1"] <= 32 and avail["V"] <= 64
        self.chunk, self.avail, self.order = chunk, avail, order

    def dma_job(self, j):
        A = self.typ == "A"
        base = self.chunk[j] * CH
        def ops(n, vg, s, sbase, so, lbase, lo):
            l = [Atom([f"s_add_u32 m0, s{lbase}, {lo}", f"s_add_u32 s{sTD}, s{sbase}, {so}",
                       I(f"buffer_load_dwordx4 v{vg}, {srd(s)}, s{sTD} offen lds", tag=j, cost=8)])]
            for i in range(1, n):
                l.append(I(f"buffer_load_dwordx4 v{vg+i}, {srd(s)}, s{sTD} offen offset:{i*1024} lds", tag=j, cost=8))
            return l
        m1, st1 = (S_WQ, 3072) if A else (S_W1, 3584)
        m2, st2 = (S_W1, 3584) if A else (S_WQ, 3072)
        if j[0] == "x":
            return ops(4, vXG, S_X, sXO, int(j[1:]) * 128, sL4K, base)
        if j[0] == "s":
            a = int(j[1:])
            return ops(2, vWG1, m1, sBLK[0], 64 * a * st1, sL2K, base + (a & 1) * 8192)
        if j[0] == "w":
            b, k = int(j[1]), int(j[3])
            if b == 1: return ops(4, vWG1, m1, sBLK[1], 128 * k * st1, sL4K, base)
            if b == 2: return ops(4, vWG2, m2, sBLK[2], 128 * k * st2, sL4K, base)
            return ops(4, vWGH, S_W1, sBLK[3], 256 * k * 3584, sL4K, base)
        if j[0] == "g":
            g = int(j[1:])
            if g < 8: s, sb, row = S_W2, sW2B, 128 * ((g & 3) >> 1) + 64 * (g >> 2) + 32 * (g & 1)
            elif g < 12: s, sb, row = S_W2, sW2A, 128 * ((g - 8) >> 1) + 32 * (g & 1)
            elif g < 14: s, sb, row = S_W2, sW2A, 64 + 32 * (g - 12)
            else: s, sb, row = S_WO, sWO, 32 * (g - 14)
            return ops(4, vW2G, s, sb, row * 1024, sL4K, base)
        return []

    def a_slot(self, j):
        slots = [192 + 8 * i for i in range(8)] + [8 * i for i in range(16)]
        return slots[j % len(slots)]

    def build_steps(self):
        A = self.typ == "A"
        steps = []
        def wfrag(i): return aWF + 8 * (i % 4)
        def trs(dst, reg, off, d2):
            return [f"ds_read_b64_tr_b16 {ar(dst,2)}, v{reg} offset:{off}", f"ds_read_b64_tr_b16 {ar(dst+2,2)}, v{reg} offset:{off+d2}"]
        def mf(acc, a, b, c): return f"v_mfma_f32_32x32x16_bf16 {vr(acc,16)}, {a}, {b}, {c}"
        accs = [ACX, ACY, ACX, ACY]
        bias_of = {("A", 2): 0, ("A", 3): 2, ("B", 0): 0, ("B", 1): 2}
        for b in range(4 if A else 3):
            acc = accs[b]
            nt = 1 if b == 3 else 2
            for s in range(32):
                i = len(steps)
                rd, mm = [], []
                if b == 0:
                    a, u = s >> 2, s & 3
                    r, o = win(vXR + u, 4, self.chunk[f"x{a}"] * CH)
                    xrd = f"ds_read_b128 {ar(aX+4*s)}, v{r} offset:{o}"
                    off = self.chunk[f"s{a}"] * CH + (s & 7) * 2048
                    stage = f"c{a}"
                elif b < 3:
                    off = self.chunk[f"w{b}_{s>>3}"] * CH + (s & 7) * 2048
                    stage = f"b{b}_{s>>3}"
                else:
                    off = self.chunk[f"w3_{s>>4}"] * CH + (s & 15) * 1024
                    stage = f"h{s>>4}"
                for t in range(nt):
                    if b < 3:
                        r, o = win(vWR + t, 2, off); rd += trs(wfrag(i) + 4 * t, r, o, 512)
                    else:
                        r, o = win(vHR, 1, off); rd += trs(wfrag(i), r, o, 256)
                if b == 0:
                    rd += [f"ds_read_b128 {ar(aGF+4*(s&1))}, v{vGR} offset:{s*32}", xrd]
                for t in reversed(range(nt)):
                    c = vr(acc + 16 * t, 16)
                    if s == 0:
                        if (self.typ, b) in bias_of:
                            mm.append(mf(acc + 16 * t, ar(aBIAS + 2 * (bias_of[(self.typ, b)] + t)), ar(aONE), "0"))
                        else: c = "0"
                    mm.append(mf(acc + 16 * t, ar(wfrag(i) + 4 * t), ar(aX + 4 * s), c))
                if b == 0:
                    mm.append(I(f"v_mfma_f32_16x16x32_bf16 {vr(AC2)}, {ar(aGF+4*(s&1))}, {ar(aX+4*s)}, {'0' if s == 0 else vr(AC2)}", tag="nogap"))
                steps.append(Step(rd, mm, stage))
        for j in range(36):
            i = len(steps)
            off = self.chunk[f"g{j>>1}"] * CH + (j & 1) * 2048
            rd = []
            for t in range(2):
                r, o = win(vW2R + t, 2, off); rd += trs(wfrag(i) + 4 * t, r, o, 1024)
            mm = []
            for rt in (1, 0):
                for t in (1, 0):
                    acc = AC2 + 16 * (2 * rt + t)
                    mm.append(mf(acc, ar(wfrag(i) + 4 * t), ar(self.a_slot(j) + 4 * rt), "0" if j == 0 else vr(acc, 16)))
            steps.append(Step(rd, mm, f"g{j>>1}", True))
        self.steps = steps

    def gate_fin(self):
        return [f"v_permlane16_swap_b32 v{AC2}, v{AC2+1}", f"v_mul_f32 v{vG}, 0xbfb8aa3b, v{AC2}", f"v_exp_f32 v{vG}, v{vG}", f"v_add_f32 v{vG}, 1.0, v{vG}",
                f"v_rcp_f32 v{vG}, v{vG}", f"v_sub_f32 v{vC}, 1.0, v{vG}", f"v_mul_f32 v{vM2C}, -2.0, v{vC}"]

    def h_epi(self, acc, sbase, seg, slot, tag):
        W, O = TMP + 40, TMP + 48
        l = []
        for half in range(2):
            o = O + 4 * ((slot * 2 + half) & 3)
            for grp in range(2):
                e = [acc + 8 * half + 4 * grp + k for k in range(4)]
                w = [W + 4 * grp + k for k in range(4)]
                l += [f"v_mul_f32 v{w[k]}, s{sLOG}, v{e[k]}" for k in range(4)]
                l += [f"v_exp_f32 v{w[k]}, v{w[k]}" for k in range(4)]
                l += [f"v_add_f32 v{w[k]}, 1.0, v{w[k]}" for k in range(4)]
                l += [f"v_fma_f32 v{w[k]}, v{w[k]}, v{w[k]}, 1.0" for k in range(4)]
                l += [f"v_rcp_f32 v{w[k]}, v{w[k]}" for k in range(4)]
                l += [f"v_fma_f32 v{w[k]}, v{w[k]}, v{vM2C}, v{vC}" for k in range(4)]
                l += [f"v_mul_f32 v{w[k]}, v{e[k]}, v{w[k]}" for k in range(4)]
                l += [f"v_cvt_pk_bf16_f32 v{o+2*grp+k}, v{w[2*k]}, v{w[2*k+1]}" for k in range(2)]
            st = I(f"buffer_store_dwordx4 {vr(o)}, v{vL16}, {srd(S_WS)}, s{sTS} offen offset:{(2*slot+half)*1024} sc1", tag=tag, cost=8)
            l.append(Atom([f"s_add_u32 s{sTS}, s{sbase}, {seg*1024}", st]))
        return l

    def feat_head(self, acc):
        K = TMP + 32
        l = [f"v_cvt_pk_bf16_f32 v{K+i}, v{acc+2*i}, v{acc+2*i+1}" for i in range(16)]
        for t, D in ((0, TMP), (1, acc)):
            for hd in range(2):
                l.append(f"v_mfma_f32_32x32x16_bf16 {vr(D+16*hd,16)}, {ar(aWPHI+4*t)}, {vr(K+8*t+4*hd)}, 0")
        return l

    def softmax(self, D, out):
        P = [D, D + 24]; E = [D + 8, D + 16]
        S = TMP + 48
        mx, mn, t0, t1 = [S, S + 1], [S + 2, S + 3], S + 4, S + 5
        l = []
        for k, (a, b) in enumerate(((0, None), (3, 4), (5, 6), (7, None))):
            for op, r in (("max", mx), ("min", mn)):
                for h in range(2):
                    p = P[h]
                    if k == 0: l.append(f"v_{op}3_f32 v{r[h]}, v{p}, v{p+1}, v{p+2}")
                    elif b is None: l.append(f"v_{op}_f32 v{r[h]}, v{r[h]}, v{p+a}")
                    else: l.append(f"v_{op}3_f32 v{r[h]}, v{r[h]}, v{p+a}, v{p+b}")
        l += [f"v_permlane32_swap_b32 v{mx[0]}, v{mx[1]}", f"v_permlane32_swap_b32 v{mn[0]}, v{mn[1]}",
              f"v_max_f32 v{mx[0]}, v{mx[0]}, v{mx[1]}", f"v_min_f32 v{mn[0]}, v{mn[0]}, v{mn[1]}",
              f"v_mul_f32 v{mx[0]}, s{sLOG}, v{mx[0]}", f"v_mul_f32 v{mn[0]}, s{sLOG}, v{mn[0]}",
              f"v_mov_b32 v{mx[1]}, v{mx[0]}", f"v_mov_b32 v{mn[1]}, v{mn[0]}", "s_nop 0",
              f"v_permlane32_swap_b32 v{mx[0]}, v{mx[1]}", f"v_permlane32_swap_b32 v{mn[0]}, v{mn[1]}"]
        for h in range(2):
            for g in range(2):
                idx = range(4 * g, 4 * g + 4)
                l += [f"v_fma_f32 v{E[h]+k}, v{P[h]+k}, -s{sLOG}, v{mn[h]}" for k in idx]
                l += [f"v_fma_f32 v{P[h]+k}, v{P[h]+k}, s{sLOG}, -v{mx[h]}" for k in idx]
                l += [f"v_exp_f32 v{E[h]+k}, v{E[h]+k}" for k in idx]
                l += [f"v_exp_f32 v{P[h]+k}, v{P[h]+k}" for k in idx]
        sp, sm = mx, mn
        for k in range(1, 8):
            for r, src in ((sp, P), (sm, E)):
                for h in range(2):
                    a = f"v{src[h]}" if k == 1 else f"v{r[h]}"
                    l.append(f"v_add_f32 v{r[h]}, {a}, v{src[h]+k}")
        l += [f"v_permlane32_swap_b32 v{sp[0]}, v{sp[1]}", f"v_permlane32_swap_b32 v{sm[0]}, v{sm[1]}",
              f"v_add_f32 v{sp[0]}, v{sp[0]}, v{sp[1]}", f"v_add_f32 v{sm[0]}, v{sm[0]}, v{sm[1]}",
              f"v_rcp_f32 v{sp[0]}, v{sp[0]}", f"v_rcp_f32 v{sm[0]}, v{sm[0]}",
              f"v_mov_b32 v{sp[1]}, v{sp[0]}", f"v_mov_b32 v{sm[1]}, v{sm[0]}", "s_nop 0",
              f"v_permlane32_swap_b32 v{sp[0]}, v{sp[1]}", f"v_permlane32_swap_b32 v{sm[0]}, v{sm[1]}"]
        post = []
        for h in range(2):
            for sg, (src, r) in enumerate(((P, sp), (E, sm))):
                q = [f"v_mul_f32 v{src[h]+k}, v{r[h]}, v{src[h]+k}" for k in range(8)]
                q += [f"v_cvt_pk_bf16_f32 v{out[2*h+sg]+k}, v{src[h]+2*k}, v{src[h]+2*k+1}" for k in range(4)]
                post.append(q)
        return l, post

    def flag(self, stage, tag):
        return [WaitVM(tag), Atom([f"s_add_u32 s{sT3}, s{sTAG}, {stage}",
                                   f"v_mov_b32 v{vFV}, s{sT3}", "s_mov_b64 exec, 1",
                                   I(f"buffer_store_dword v{vFV}, v{vFA}, {srd(S_WS)}, 0 offen sc1", cost=8), "s_mov_b64 exec, -1"])]

    def poll_load(self, va):
        return I(f"buffer_load_dword v{vPD}, v{va}, {srd(S_WS)}, 0 offen sc1", cost=8)

    def poll_check(self, va, need, mask, name):
        lab = f"{self.typ}_{name}"
        chk = [f"v_subrev_u32 v{vPT}, s{sT1}, v{vPD}", f"v_cmp_gt_u32 vcc, {8-need}, v{vPT}", f"s_andn2_b32 s{sT2}, {mask}, vcc_lo"]
        def side(p):
            q = Prog()
            q.add([f"L_retry_{lab}:", f"s_add_u32 s{sSPIN}, s{sSPIN}, 1", f"s_cmp_gt_u32 s{sSPIN}, 0x40000", "s_cbranch_scc1 L_end",
                   self.poll_load(va), "s_waitcnt vmcnt(0)"])
            q.vm_done = q.vm_n
            q.add(chk + [f"s_cbranch_scc1 L_retry_{lab}", "s_nop 1", f"s_branch L_back_{lab}"])
            self.side.append(q.text())
        return Atom([f"s_add_u32 s{sT1}, s{sTAG}, {need}"] + chk + [f"s_cbranch_scc1 L_retry_{lab}", f"L_back_{lab}:", Call(side)])

    def tag_check(self):
        lab = self.typ + "_tag"
        chk = [f"v_readfirstlane_b32 s{sTAG}, v{vTG}", f"s_cmp_eq_u32 s{sTAG}, 0"]
        def side(p):
            q = Prog()
            q.add([f"L_retry_{lab}:", f"s_add_u32 s{sSPIN}, s{sSPIN}, 1", f"s_cmp_gt_u32 s{sSPIN}, 0x40000", "s_cbranch_scc1 L_end",
                   f"buffer_load_dword v{vTG}, off, {srd(S_DBG)}, 0 sc1", "s_waitcnt vmcnt(0)"])
            q.vm_done = q.vm_n
            q.add(chk + [f"s_cbranch_scc1 L_retry_{lab}", "s_nop 1", f"s_branch L_back_{lab}"])
            self.side.append(q.text())
        return Atom(chk + [f"s_cbranch_scc1 L_retry_{lab}", f"L_back_{lab}:", Call(side)])

    def stamp(self, name):
        if not self.cfg.diag or name not in self.cfg.stamps.split(","): return []
        assert self.nstamp < 9
        k = sSTAMP + 2 * self.nstamp; self.nstamp += 1; self.stamps.append(name)
        def after(p): p.ds_done = p.ds_n
        return [Atom([f"{'s_memtime' if self.cfg.cyc else 's_memrealtime'} s[{k}:{k+1}]", "s_waitcnt lgkmcnt(0)", Call(after)])]

    def a_block1(self):
        ch = self.chunk
        l = self.feat_head(ACX) + self.gate_fin()
        l += [f"v_and_b32 v{vT}, 31, v{vL}", f"v_lshl_add_u32 v{vT}, s{sW}, 5, v{vT}", f"v_lshlrev_b32 v{vKXW}, 5, v{vT}",
              f"v_lshrrev_b32 v{vT}, 5, v{vL}", f"v_lshl_add_u32 v{vKXW}, v{vT}, 4, v{vKXW}",
              f"v_add_u32 v{vKXW+1}, 0x10000, v{vKXW}", f"v_add_u32 v{vKXW+2}, 0x20000, v{vKXW}"]
        for k in range(4): l.append(f"v_accvgpr_write_b32 a{aC0+k}, s{sP}")
        O = [TMP + 32 + 4 * k for k in range(4)]
        for t, D in ((0, TMP), (1, ACX)):
            body, post = self.softmax(D, O)
            l += body
            for k, q in enumerate(post):
                r, o = win(vKXW, 1, ch[f"P{t}"] * CH + k * 4096)
                l += q + [f"ds_write_b128 v{r}, {vr(O[k])} offset:{o}"]
        return l

    def a_vepi(self):
        l = []
        for hd in range(4):
            l += [f"v_cvt_pk_bf16_f32 v{TMP+4*hd+k}, v{ACY+8*hd+2*k}, v{ACY+8*hd+2*k+1}" for k in range(4)]
            r, o = win(vKXW, 1, self.chunk["V"] * CH + hd * 4096)
            l.append(f"ds_write_b128 v{r}, {vr(TMP+4*hd)} offset:{o}")
        ch = self.chunk
        l += [f"s_mov_b32 s{sT1}, {ch['P0']*CH}", f"s_mov_b32 s{sT2}, {ch['P1']*CH}",
              Atom([f"s_cmp_lt_u32 s{sW}, 2", f"s_cselect_b32 s{sT1}, s{sT1}, s{sT2}"]),
              f"s_and_b32 s{sT2}, s{sW}, 1", f"s_lshl_b32 s{sT2}, s{sT2}, 13", f"s_add_u32 s{sT1}, s{sT1}, s{sT2}",
              f"v_lshl_add_u32 v{vKXP}, v{vL}, 3, s{sT1}", f"s_add_u32 s{sT2}, s{sL4K}, {ch['V']*CH}",
              f"v_lshl_add_u32 v{vKXV}, v{vL}, 3, s{sT2}",
              f"v_and_b32 v{vKVST}, 0x33, v{vL}", f"v_and_b32 v{vT}, 4, v{vL}", f"v_lshl_or_b32 v{vKVST}, v{vT}, 1, v{vKVST}",
              f"v_bfe_u32 v{vT}, v{vL}, 3, 1", f"v_lshl_or_b32 v{vKVST}, v{vT}, 2, v{vKVST}",
              f"v_and_b32 v{vZST}, 31, v{vKVST}", f"v_lshlrev_b32 v{vZST}, 2, v{vZST}", f"v_lshlrev_b32 v{vKVST}, 4, v{vKVST}"]
        return l

    def a_kv(self):
        V, PH, D = TMP, TMP + 16, TMP + 48
        l = []
        for k in range(4):
            l += [f"ds_read_b64_tr_b16 {vr(V+4*k,2)}, v{vKXV} offset:{k*1024}", f"ds_read_b64_tr_b16 {vr(V+4*k+2,2)}, v{vKXV} offset:{k*1024+512}"]
            for sg in range(2):
                q = PH + 16 * sg + 4 * k
                l += [f"ds_read_b64_tr_b16 {vr(q,2)}, v{vKXP} offset:{sg*4096+k*1024}", f"ds_read_b64_tr_b16 {vr(q+2,2)}, v{vKXP} offset:{sg*4096+k*1024+512}"]
        for k in range(4):
            for sg in range(2):
                q = PH + 16 * sg + 4 * k
                l.append(f"v_mfma_f32_16x16x32_bf16 {vr(D+4*sg)}, {vr(V+4*k)}, {vr(q)}, {'0' if k == 0 else vr(D+4*sg)}")
                l.append(f"v_mfma_f32_16x16x32_bf16 {vr(D+8+4*sg)}, {ar(aC0)}, {vr(q)}, {'0' if k == 0 else vr(D+8+4*sg)}")
        l += [f"v_cvt_pk_bf16_f32 v{V}, v{D}, v{D+1}", f"v_cvt_pk_bf16_f32 v{V+1}, v{D+2}, v{D+3}",
              f"v_cvt_pk_bf16_f32 v{V+2}, v{D+4}, v{D+5}", f"v_cvt_pk_bf16_f32 v{V+3}, v{D+6}, v{D+7}",
              f"v_permlane16_swap_b32 v{D+8}, v{D+12}",
              f"v_permlane16_swap_b32 v{V}, v{V+2}", f"v_permlane16_swap_b32 v{V+1}, v{V+3}",
              I(f"buffer_store_dword v{D+8}, v{vZST}, {srd(S_WS)}, s{sZ} offen sc1", tag="kv", cost=8),
              I(f"buffer_store_dwordx4 {vr(V)}, v{vKVST}, {srd(S_WS)}, s{sKV} offen sc1", tag="kv", cost=8)]
        return l

    def b_qepi(self):
        l = self.feat_head(ACX)
        T0, T1 = TMP + 56, TMP + 57
        l += [f"v_bfe_u32 v{T0}, v{vL}, 2, 1", f"v_lshrrev_b32 v{T1}, 5, v{vL}", f"v_xor_b32 v{T0}, v{T0}, v{T1}",
              f"v_bfe_u32 v{T1}, v{vL}, 4, 1", f"v_or_b32 v{T0}, v{T0}, v{T1}",
              f"v_bfe_u32 v{T1}, v{vL}, 3, 1", f"v_lshlrev_b32 v{T1}, 1, v{T1}", f"v_bfe_u32 v{vT}, v{vL}, 1, 1", f"v_or_b32 v{T1}, v{T1}, v{vT}",
              f"v_lshl_or_b32 v{T0}, v{T0}, 2, v{T1}",
              f"v_and_b32 v{T1}, 1, v{vL}", f"v_lshlrev_b32 v{T1}, 4, v{T1}", f"v_lshlrev_b32 v{T1}, v{T1}, s{sP}"]
        for k in range(4):
            l += [Atom([f"v_cmp_eq_u32 vcc, {k}, v{T0}", f"v_cndmask_b32 v{vT}, 0, v{T1}, vcc", f"v_accvgpr_write_b32 a{aC0+k}, v{vT}"])]
        l += [f"v_lshrrev_b32 v{T0}, 4, v{vL}", f"v_mov_b32 v{T1}, s{sP}",
              Atom([f"v_cmp_eq_u32 vcc, 1, v{T0}", f"v_cndmask_b32 v{vT}, 0, v{T1}, vcc", f"v_accvgpr_write_b32 a{aC1}, v{vT}"])]
        l += [f"v_accvgpr_write_b32 a{aC1+k}, 0" for k in range(1, 4)]
        l += [f"v_and_b32 v{vT}, 31, v{vL}", f"v_lshlrev_b32 v{vZLD}, 2, v{vT}", f"v_lshrrev_b32 v{vT}, 5, v{vL}",
              f"v_lshl_add_u32 v{vZLD}, v{vT}, 10, v{vZLD}", f"v_add_u32 v{vKVT}, {KVT_L}, v{vL16}"]
        for t, D in ((0, TMP), (1, ACX)):
            body, post = self.softmax(D, [ACY + 16 * t + 4 * k for k in range(4)])
            l += body
            for q in post: l += q
        return l

    def b_gather_loads(self):
        l = []
        for k in range(8):
            l.append(I(f"buffer_load_dword v{ACX+16+k}, v{vZLD}, {srd(S_WS)}, s{sZ} offen offset:{k*128} sc1", cost=8))
        for p in range(16):
            ld = I(f"buffer_load_dwordx4 {vr(TMP+4*p)}, v{vL16}, {srd(S_WS)}, s{sTG} offen offset:{(p&3)*1024} sc1", cost=8)
            l.append(Atom([f"s_add_u32 s{sTG}, s{sKV}, {p*1024}", ld]) if p % 4 == 0 else ld)
        return l

    def b_gather_sum(self):
        Z, AZ = ACX + 16, ACX + 24
        l = [f"v_add_f32 v{Z+2*k}, v{Z+2*k}, v{Z+2*k+1}" for k in range(4)]
        l += [f"v_add_f32 v{Z}, v{Z}, v{Z+2}", f"v_add_f32 v{Z+4}, v{Z+4}, v{Z+6}", f"v_add_f32 v{Z}, v{Z}, v{Z+4}", f"v_mov_b32 v{Z+1}, v{Z}"]
        l += [f"v_mov_b32 v{AZ+k}, 0" for k in range(1, 4)]
        l += [f"v_permlane32_swap_b32 v{Z}, v{Z+1}", f"v_add_f32 v{Z}, v{Z}, v{Z+1}", f"v_cvt_pk_bf16_f32 v{AZ}, v{Z}, v{AZ+1}"]
        for p in range(16):
            l.append(f"v_mfma_f32_32x32x16_bf16 {vr(ACX,16)}, {vr(TMP+4*p)}, {ar(aC0)}, {'0' if p == 0 else vr(ACX,16)}")
        l.append(f"v_mfma_f32_32x32x16_bf16 {vr(ACX,16)}, {vr(AZ)}, {ar(aC1)}, {vr(ACX,16)}")
        l.append(f"v_lshl_add_u32 v{vT}, s{sW}, 11, v{vKVT}")
        l += [f"v_cvt_pk_bf16_f32 v{TMP+k}, v{ACX+2*k}, v{ACX+2*k+1}" for k in range(8)]
        l += [f"ds_write_b128 v{vT}, {vr(TMP)}", f"ds_write_b128 v{vT}, {vr(TMP+4)} offset:1024", WaitLGKM0(), "s_barrier"]
        return l

    def b_o(self):
        KT, W, O = TMP + 8, TMP + 40, TMP + 48
        l = [f"ds_read_b128 {vr(KT+4*k)}, v{vKVT} offset:{k*1024}" for k in range(8)]
        def mm(hd):
            D = ACX + 16 * (hd & 1)
            return [f"v_mfma_f32_32x32x16_bf16 {vr(D,16)}, {vr(KT+8*hd)}, {vr(ACY+8*hd)}, 0",
                    f"v_mfma_f32_32x32x16_bf16 {vr(D,16)}, {vr(KT+8*hd+4)}, {vr(ACY+8*hd+4)}, {vr(D,16)}"]
        def fin(hd):
            D = ACX + 16 * (hd & 1); o = O + 4 * hd
            q = [f"v_add_f32 v{W}, 0x358637bd, v{D+8}", f"v_rcp_f32 v{W}, v{W}", f"v_mul_f32 v{W}, v{W}, v{vG}"]
            q += [f"v_mul_f32 v{D+k}, v{W}, v{D+k}" for k in range(8)]
            q += [f"v_cvt_pk_bf16_f32 v{o+k}, v{D+2*k}, v{D+2*k+1}" for k in range(4)]
            q.append(Atom([f"s_add_u32 s{sTS}, s{sAF4}, {28*1024}",
                           I(f"buffer_store_dwordx4 {vr(o)}, v{vL16}, {srd(S_WS)}, s{sTS} offen offset:{hd*1024} sc1", tag="o", cost=8)]))
            return q
        l += mm(0) + mm(1) + fin(0) + mm(2) + fin(1) + mm(3) + fin(2) + fin(3)
        return l

    def a_load(self, j):
        l = []
        for rt in range(2):
            l.append(I(f"buffer_load_dwordx4 {ar(self.a_slot(j)+4*rt)}, v{vL16+rt}, {srd(S_WS)}, s{sTA} offen offset:{(j&3)*1024} sc1", cost=8))
        if j % 4 == 0: l[0] = Atom([f"s_add_u32 s{sTA}, s{sAFLD}, {j*1024}", l[0]])
        return l

    def final(self):
        l = [WaitLGKM0(), "s_barrier"]
        A0, A1 = 4, 5
        l += [f"v_and_b32 v{vT}, 31, v{vL}", f"s_movk_i32 s{sT1}, {RED_STRIDE}", f"v_mul_u32_u24 v{A0}, s{sT1}, v{vT}",
              f"v_lshrrev_b32 v{vT}, 5, v{vL}", f"v_lshl_add_u32 v{A0}, v{vT}, 4, v{A0}",
              f"s_mul_i32 s{sT2}, s{sW}, {RED_PART}", f"v_add_u32 v{A0}, s{sT2}, v{A0}",
              f"v_lshrrev_b32 v{vT}, 3, v{vL}", f"v_lshl_add_u32 v{vT}, s{sW}, 4, v{vT}", f"v_mul_u32_u24 v{A1}, s{sT1}, v{vT}",
              f"v_and_b32 v{vT}, 7, v{vL}", f"v_lshl_add_u32 v{A1}, v{vT}, 5, v{A1}",
              f"v_lshlrev_b32 v6, 4, v{vT}", f"v_lshrrev_b32 v{vT}, 3, v{vL}", f"v_lshl_add_u32 v6, v{vT}, 10, v6",
              f"s_add_u32 s{sT2}, s{sOUT}, 8192"]
        for rt in range(2):
            for t in range(2):
                for q in range(4):
                    l.append(f"ds_write_b128 v{A0}, {vr(AC2+16*(2*rt+t)+4*q)} offset:{rt*32*RED_STRIDE + t*128 + q*32}")
        l += [WaitLGKM0(), "s_barrier"]
        for p in range(2):
            for hf in range(2):
                for w in range(4):
                    l.append(f"ds_read_b128 {vr(TMP+32*p+16*hf+4*w)}, v{A1} offset:{w*RED_PART + p*8*RED_STRIDE + hf*16}")
        for p in range(2):
            for hf in range(2):
                b = TMP + 32 * p + 16 * hf
                l += [f"v_add_f32 v{b+k}, v{b+k}, v{b+4+k}" for k in range(4)]
                l += [f"v_add_f32 v{b+8+k}, v{b+8+k}, v{b+12+k}" for k in range(4)]
                l += [f"v_add_f32 v{b+k}, v{b+k}, v{b+8+k}" for k in range(4)]
                l += [f"v_cvt_pk_bf16_f32 v{8+4*p+2*hf+k}, v{b+2*k}, v{b+2*k+1}" for k in range(2)]
            l.append(f"buffer_store_dwordx4 {vr(8+4*p)}, v6, {srd(S_OUT)}, s{sOUT if p == 0 else sT2} offen {self.cfg.out_flags}".rstrip())
        return l

    def setup(self):
        A = self.typ == "A"
        st1, st2 = (3072, 3584) if A else (3584, 3072)
        l = []
        if A: l += [f"s_lshl_b32 s{sT1}, s{sHG}, 7", f"s_add_u32 s{sT1}, s{sT1}, 1024"]
        else: l += [f"s_lshl_b32 s{sT1}, s{sHG}, 8", f"s_add_u32 s{sT1}, s{sT1}, 1536"]
        l += [f"s_mul_i32 s{sT2}, s{sW}, {16*st1}", f"s_add_u32 s{sBLK[0]}, s{sT1}, s{sT2}",
              f"s_add_u32 s{sBLK[1]}, s{sBLK[0]}, s{sT2}", f"s_add_u32 s{sBLK[1]}, s{sBLK[1]}, {1024 if A else 128}",
              f"s_movk_i32 s{sT2}, {st1}", f"v_mad_u32_u24 v{vWG1}, v62, s{sT2}, v63"]
        l += [f"v_add_u32 v{vWG1+i}, {i*(8*st1-1024)}, v{vWG1}" for i in range(1, 4)]
        first = [j for j in self.order if self.avail[j] == 0]
        seq = []
        for j in first:
            seq.append(j)
            if j[0] == "x" and int(j[1:]) % 2 == 1 and f"s{int(j[1:])-1}" in first: seq.append(f"s{j[1:]}")
        late = [f"s{a}" for a in range(1, 8, 2) if f"s{a-1}" in first and f"s{a}" not in seq]
        self.first = seq + late
        l += self.dma_job(seq[0]) + self.dma_job(seq[1])
        l += [f"s_lshl_b32 s{sT1}, s{sW}, 8", f"s_add_u32 m0, s{sT1}, {GATE_L}", "s_mov_b64 exec, 0xffff",
              I(f"buffer_load_dwordx4 v{vL16}, {srd(S_GATE)}, s{sT1} offen lds", tag="misc"),
              f"s_lshl_b32 s{sT1}, s{sW}, 9", f"s_add_u32 m0, s{sT1}, {WPHI_L}", f"s_lshl_b32 s{sT2}, s{sHG}, 11", f"s_add_u32 s{sT1}, s{sT1}, s{sT2}",
              "s_mov_b32 exec_lo, -1",
              I(f"buffer_load_dwordx4 v{vL16}, {srd(S_WPHI)}, s{sT1} offen lds", tag="misc"), "s_mov_b64 exec, -1",
              f"v_and_b32 v{vBO}, 31, v{vL}", f"v_lshlrev_b32 v{vBO}, 1, v{vBO}", f"s_and_b32 s{sP}, s{sHG}, 1"]
        if A:
            l += [f"s_mul_i32 s{sT1}, s{sHG}, 192", f"s_lshl_b32 s{sT2}, s{sP}, 6", f"s_add_u32 s{sBLK[2]}, s{sT1}, s{sT2}",
                  f"s_xor_b32 s{sT2}, s{sP}, 1", f"s_lshl_b32 s{sT2}, s{sT2}, 7", f"s_add_u32 s{sBLK[3]}, s{sT1}, s{sT2}",
                  f"buffer_load_ushort a{aBIAS}, v{vBO}, {srd(S_B1)}, s{sBLK[2]} offen",
                  f"buffer_load_ushort a{aBIAS+2}, v{vBO}, {srd(S_B1)}, s{sBLK[2]} offen offset:64",
                  f"buffer_load_ushort a{aBIAS+4}, v{vBO}, {srd(S_B1)}, s{sBLK[3]} offen",
                  f"v_accvgpr_write_b32 a{aBIAS+6}, 0"]
        else:
            l += [f"s_lshl_b32 s{sT1}, s{sHG}, 8", f"s_add_u32 s{sT1}, s{sT1}, 1536"]
            l += [f"buffer_load_ushort a{aBIAS+2*t}, v{vBO}, {srd(S_B1)}, s{sT1} offen offset:{64*t}" for t in range(4)]
            l += [f"s_lshl_b32 s{sBLK[2]}, s{sHG}, 7"]
        head, l = l, []
        burst = []
        for n, j in enumerate(self.first[2:]):
            burst += self.dma_job(j)
            if n == 1 and self.cfg.pre & 1: burst += self.prefetch(((S_WQ, 12), (S_W1, 14)))
        this_pre = self.prefetch(((S_W2, 14), (S_WO, 4))) if self.cfg.pre & 2 else []
        l += [f"s_mul_i32 s{sT2}, s{sW}, {32*st2}", f"s_add_u32 s{sBLK[2]}, s{sBLK[2]}, s{sT2}",
              f"s_movk_i32 s{sT2}, {st2}", f"v_mad_u32_u24 v{vWG2}, v62, s{sT2}, v63"]
        l += [f"v_add_u32 v{vWG2+i}, {i*(8*st2-1024)}, v{vWG2}" for i in range(1, 4)]
        l += [f"v_lshl_add_u32 v{vW2G}, v62, 10, v63"] + [f"v_add_u32 v{vW2G+i}, {i*7168}, v{vW2G}" for i in range(1, 4)]
        if A:
            l += [f"s_mul_i32 s{sT2}, s{sW}, {64*3584}", f"s_add_u32 s{sBLK[3]}, s{sBLK[3]}, s{sT2}",
                  f"v_lshrrev_b32 v{vT}, 2, v{vL}", f"v_mul_u32_u24 v{vWGH}, 3584, v{vT}", f"v_and_b32 v{vT}, 3, v{vL}",
                  f"v_lshl_add_u32 v{vWGH}, v{vT}, 4, v{vWGH}"]
            l += [f"v_add_u32 v{vWGH+i}, {i*(16*3584-1024)}, v{vWGH}" for i in range(1, 4)]
        h, r, g16, c8 = TMP + 16, TMP + 17, TMP + 18, TMP + 19
        l += [f"v_lshrrev_b32 v{h}, 5, v{vL}", f"v_bfe_u32 v{r}, v{vL}, 2, 2", f"v_and_b32 v{g16}, 16, v{vL}", f"v_and_b32 v{c8}, 3, v{vL}",
              f"v_lshlrev_b32 v{c8}, 3, v{c8}", f"v_lshl_or_b32 v{c8}, v{g16}, 1, v{c8}",
              f"v_lshrrev_b32 v{vT}, 1, v{r}", f"v_lshl_or_b32 v{g16}, v{vT}, 6, v{c8}",
              f"v_lshl_add_u32 v{g16}, v{r}, 7, v{g16}",
              f"v_lshl_add_u32 v{vWR}, v{h}, 10, v{g16}", f"v_xor_b32 v{vWR+1}, 64, v{vWR}",
              f"v_lshl_add_u32 v{vW2R}, v{h}, 9, v{g16}", f"v_add_u32 v{vW2R}, s{sL4K}, v{vW2R}", f"v_xor_b32 v{vW2R+1}, 64, v{vW2R}"]
        for wn in (1, 2):
            l += [f"v_add_u32 v{vWR+2*wn+t}, {wn<<16}, v{vWR+t}" for t in range(2)]
            l += [f"v_add_u32 v{vW2R+2*wn+t}, {wn<<16}, v{vW2R+t}" for t in range(2)]
        if A:
            l += [f"v_lshl_add_u32 v{vHR}, v{r}, 6, v{c8}", f"v_lshl_add_u32 v{vHR}, v{h}, 9, v{vHR}",
                  f"v_add_u32 v{vHR+1}, 0x10000, v{vHR}", f"v_add_u32 v{vHR+2}, 0x20000, v{vHR}"]
        l += [f"v_bfe_u32 v{vT}, v{vL}, 1, 3", f"v_xor_b32 v{vT}, v{vT}, v{h}", f"v_lshlrev_b32 v{vT}, 4, v{vT}",
              f"v_and_b32 v{g16}, 31, v{vL}", f"v_lshl_add_u32 v{vT}, v{g16}, 7, v{vT}", f"v_add_u32 v{vXR}, s{sL4K}, v{vT}"]
        l += [f"v_xor_b32 v{vXR+u}, {32*u}, v{vXR}" for u in range(1, 4)]
        for wn in (1, 2): l += [f"v_add_u32 v{vXR+4*wn+u}, {wn<<16}, v{vXR+u}" for u in range(4)]
        l += [f"v_and_b32 v{vT}, 7, v{vL}", f"v_bfe_u32 v{g16}, v{vL}, 4, 1", f"v_lshlrev_b32 v{vGR}, 4, v{h}", f"v_add_u32 v{vGR}, {GATE_L}, v{vGR}",
              f"v_mov_b32 v{c8}, {ZERO_L}", Atom([f"v_cmp_eq_u32 vcc, v{vT}, v{g16}", f"v_cndmask_b32 v{vGR}, v{c8}, v{vGR}, vcc"]),
              f"v_add_u32 v{vT}, {ZERO_L}, v{vL16}"] + [f"v_mov_b32 v{TMP+24+k}, 0" for k in range(4)] + [f"ds_write_b128 v{vT}, {vr(TMP+24)}",
              f"v_lshl_add_u32 v{vT}, v{h}, 2, v{r}", f"v_lshlrev_b32 v{vT}, 5, v{vT}", f"v_and_b32 v{g16}, 3, v{vL}", f"v_lshl_add_u32 v{vT}, v{g16}, 3, v{vT}",
              f"v_and_b32 v{g16}, 16, v{vL}", f"v_lshl_add_u32 v{vT}, v{g16}, 5, v{vT}", f"v_add_u32 v{vWPR}, {WPHI_L}, v{vT}",
              f"v_mov_b32 v{vT}, 0x3f80", Atom([f"v_cmp_eq_u32 vcc, 0, v{h}", f"v_cndmask_b32 v{vT}, 0, v{vT}, vcc"]), f"v_accvgpr_write_b32 a{aONE}, v{vT}"]
        l += [f"v_accvgpr_write_b32 a{k}, 0" for k in (aONE + 1, aONE + 2, aONE + 3, aBIAS + 1, aBIAS + 3, aBIAS + 5, aBIAS + 7, aBIAS + 8, aBIAS + 9)]
        l += [f"s_lshl_b32 s{sT1}, s{sRB}, 2", f"s_add_u32 s{sT1}, s{sT1}, s{sW}", f"s_mul_i32 s{sT1}, s{sT1}, {RT_STRIDE}",
              f"s_lshr_b32 s{sT2}, s{sHG}, 1", f"s_mul_i32 s{sT2}, s{sT2}, {36*1024}", f"s_add_u32 s{sT1}, s{sT1}, s{sT2}", f"s_add_u32 s{sT1}, s{sT1}, {AF}",
              f"s_lshl_b32 s{sT2}, s{sP}, 12", f"s_add_u32 s{sAF4}, s{sT1}, s{sT2}", f"s_lshl_b32 s{sT2}, s{sP}, 11", f"s_add_u32 s{sAF2}, s{sT1}, s{sT2}",
              f"s_mul_i32 s{sT1}, s{sRB2}, {2*RT_STRIDE}", f"s_mul_i32 s{sT2}, s{sW}, {36*1024}", f"s_add_u32 s{sT1}, s{sT1}, s{sT2}", f"s_add_u32 s{sAFLD}, s{sT1}, {AF}",
              f"s_lshl_b32 s{sT1}, s{sCB}, 7", f"s_lshl_b32 s{sT2}, s{sW}, 18", f"s_add_u32 s{sW2B}, s{sT1}, s{sT2}", f"s_add_u32 s{sW2B}, s{sW2B}, {768*1024}",
              f"s_mul_i32 s{sT2}, s{sW}, {192*1024}", f"s_add_u32 s{sW2A}, s{sT1}, s{sT2}", f"s_lshl_b32 s{sT2}, s{sW}, 17", f"s_add_u32 s{sWO}, s{sT1}, s{sT2}",
              f"s_lshl_b32 s{sT2}, s{sRB2}, 16", f"s_add_u32 s{sOUT}, s{sT1}, s{sT2}", f"s_lshl_b32 s{sT2}, s{sW}, 14", f"s_add_u32 s{sOUT}, s{sOUT}, s{sT2}",
              f"s_lshl_b32 s{sT1}, s{sHG}, 2", f"s_add_u32 s{sT1}, s{sT1}, s{sW}", f"s_lshl_b32 s{sT1}, s{sT1}, 4"]
        if A: l += [f"s_add_u32 s{sT1}, s{sT1}, s{sRB}"]
        l += [f"s_lshl_b32 s{sKV}, s{sT1}, 10", f"s_add_u32 s{sKV}, s{sKV}, {KVP}", f"s_lshl_b32 s{sZ}, s{sT1}, 7", f"s_add_u32 s{sZ}, s{sZ}, {ZP}",
              f"v_add_u32 v{vL16B}, {RT_STRIDE}, v{vL16}",
              f"s_lshl_b32 s{sT1}, s{sRB}, 4", f"s_add_u32 s{sT1}, s{sT1}, s{sCG}", f"s_lshl_b32 s{sT1}, s{sT1}, 5", f"s_add_u32 s{sT1}, s{sT1}, s{sW}",
              f"s_lshl_b32 s{sT1}, s{sT1}, 2", f"v_mov_b32 v{vFA}, s{sT1}",
              f"s_lshr_b32 s{sT1}, s{sRB2}, 1", f"s_lshl_b32 s{sT1}, s{sT1}, 2", f"s_add_u32 s{sT1}, s{sT1}, s{sW}", f"s_lshl_b32 s{sT1}, s{sT1}, 9",
              f"s_and_b32 s{sT2}, s{sRB2}, 1", f"s_lshl_b32 s{sT2}, s{sT2}, 3", f"s_add_u32 s{sT1}, s{sT1}, s{sT2}",
              f"v_bfe_u32 v{vT}, v{vL}, 1, 2", f"v_lshlrev_b32 v{vPA}, 7, v{vT}", f"v_and_b32 v{vT}, 1, v{vL}", f"v_lshl_add_u32 v{vPA}, v{vT}, 2, v{vPA}",
              f"v_add_u32 v{vPA}, s{sT1}, v{vPA}"]
        if not A:
            l += [f"s_lshl_b32 s{sT1}, s{sHG}, 8", f"s_lshl_b32 s{sT2}, s{sW}, 2", f"s_add_u32 s{sT1}, s{sT1}, s{sT2}",
                  f"v_and_b32 v{vT}, 15, v{vL}", f"v_lshl_add_u32 v{vKPA}, v{vT}, 11, s{sT1}"]
        l += [f"s_mov_b32 s{sP}, {'0x3f803f80' if A else '0x3f80'}", f"s_mov_b32 s{sLOG}, {LOG2E}", f"s_mov_b32 s{sSPIN}, 0"]
        l = norm(l); burst = norm(burst)
        out, k = head, 0
        for n, b in enumerate(burst):
            out.append(b)
            k1 = len(l) * (n + 1) // len(burst)
            out += l[k:k1]; k = k1
        return out + ["s_waitcnt lgkmcnt(0)", Call(lambda p: setattr(p, "ds_done", p.ds_n))] + this_pre

    def prefetch(self, items):
        l = []
        for s_, n in items:
            l.append(Atom([f"s_lshl2_add_u32 s{sTG}, s2, s{sW}", f"s_mul_i32 s{sTG}, s{sTG}, {n*128}", f"v_lshlrev_b32 v{TMP+4}, 7, v{vL}",
                           f"s_mov_b64 exec, {hex((1 << n) - 1)}", I(f"buffer_load_dword v{TMP+4+s_//4}, v{TMP+4}, {srd(s_)}, s{sTG} offen", cost=8), "s_mov_b64 exec, -1"]))
        return l

    def leader(self, p):
        lab = self.typ
        q = Prog()
        V, A_, B_ = TMP + 32, TMP + 20, TMP + 21
        q.add([f"L_lead_{lab}:", f"v_lshlrev_b32 v{TMP+22}, 2, v{vL}", f"v_add_u32 v{TMP+22}, {BITMAP_L}, v{TMP+22}", f"v_mov_b32 v{vT}, 0",
               f"ds_write_b32 v{TMP+22}, v{vT}", f"v_mov_b32 v{TMP+23}, 1", f"s_mov_b32 s{sT3}, {BITMAP_L}", f"s_waitcnt vmcnt({p.vm_n-1})"])
        for k in range(16):
            q.add([f"v_bfe_u32 v{B_}, v{V+k}, 3, 11", f"v_lshrrev_b32 v{A_}, 5, v{B_}", f"v_lshl_add_u32 v{A_}, v{A_}, 2, s{sT3}",
                   f"v_lshlrev_b32 v{B_}, v{B_}, v{TMP+23}", f"ds_or_b32 v{A_}, v{B_}"])
        q.add([f"ds_read_b32 v{vT}, v{TMP+22}", f"v_not_b32 v{vT}, v{vT}", f"v_cmp_ne_u32 vcc, 0, v{vT}", f"s_ff1_i32_b64 s{sT1}, vcc",
               f"v_readlane_b32 s{sT2}, v{vT}, s{sT1}", f"s_ff1_i32_b32 s{sT2}, s{sT2}", f"s_lshl_b32 s{sT1}, s{sT1}, 5", f"s_add_u32 s{sT1}, s{sT1}, s{sT2}",
               f"s_lshl_b32 s{sT1}, s{sT1}, 3", f"s_or_b32 s{sT1}, s{sT1}, 0x80000000", f"v_mov_b32 v{vT}, s{sT1}", "s_mov_b64 exec, 1",
               f"buffer_store_dword v{vT}, off, {srd(S_DBG)}, 0 sc1", "s_mov_b64 exec, -1", "s_nop 1", f"s_branch L_leadback_{lab}"])
        self.side.append(q.text())

    def body(self, p):
        c, A = self.cfg, self.typ == "A"
        self.plan(); self.build_steps()
        p.add(self.setup())
        p.add([f"s_cmp_eq_u32 s{sLEAD}, 0", f"s_cbranch_scc1 L_lead_{self.typ}", f"L_leadback_{self.typ}:"])
        self.leader(p)
        steps, P1 = self.steps, self.p1
        prim, gap_at, g = [], [], 0
        first_of = {name: f for name, f, n, jobs in self.stages}
        jobs_of = {name: jobs for name, f, n, jobs in self.stages}
        nxt = 0
        extra = {}
        def at(it, items): extra.setdefault(it, []).extend(items)
        seg_need = [(0, 1, "0xcc", "b0"), (8, 2, "0xcc", "b1"), (16, 2, "0x33", "a0"), (24, 3, "0x33", "a1"), (28, 3, "0xcc", "o")]
        a_it = {}
        for j0, need, mask, nm in seg_need:
            chk = P1 + getattr(c, "chk_" + nm)
            at(chk - c.poll_lead * (1 if chk - c.poll_lead >= P1 else 2), [self.poll_load(vPA)])
            at(chk, [self.poll_check(vPA, need, mask, nm)] + self.stamp("chk_" + nm))
            a_it[j0] = chk
        for it in range(self.nsteps):
            gap_at.append(g)
            if it in self.bar:
                nm = self.bar[it]
                for j in jobs_of.get(nm, []): prim.append(WaitVM(j))
                if nm == "c0": prim.append(WaitVM("misc"))
                if nm[0] == "c" or nm == "b1_0" or (A and nm == "b2_1"): prim.append(WaitLGKM0())
                prim.append("s_barrier")
                prim += self.stamp(nm)
                if nm == "c1":
                    for t in range(2):
                        prim += [f"ds_read_b64_tr_b16 {ar(aWPHI+4*t,2)}, v{vWPR} offset:{t*1024}", f"ds_read_b64_tr_b16 {ar(aWPHI+4*t+2,2)}, v{vWPR} offset:{t*1024+256}"]
            prim += extra.get(it, [])
            while nxt < self.nsteps and self.rd_it[nxt] <= it:
                if steps[nxt].p2 and first_of[steps[nxt].stage] == nxt: prim.append(WaitVM(steps[nxt].stage))
                prim += steps[nxt].reads; nxt += 1
            prim += steps[it].mfmas; g += sum(1 for m in steps[it].mfmas if isinstance(m, str))
        gap_at.append(g)
        G = lambda it: gap_at[it]
        fill = []
        cur = 0
        self.report = []
        for j in self.order:
            if j in self.first or j in ("P0", "P1", "V"): continue
            g0 = max(cur, G(self.avail[j]))
            pace = c.pace if g0 < G(P1) else c.pace2
            if self.avail[j] < 32: pace = 3
            items = self.dma_job(j)
            if j[0] == "s": items += self.dma_job(f"s{int(j[1:])+1}")
            user = [f for name, f, n, jobs in self.stages if j in jobs][0]
            dead = G(self.rd_it[user]) - 1
            g1 = min(g0 + pace - 1, dead)
            assert g0 <= dead, (j, g0, dead)
            fill.append((items, g0, g1)); cur = g1 + 1
            self.report.append((j, self.chunk[j], g0, dead - g1))
        cur = 0
        for j in range(36):
            seg = max(j0 for j0 in a_it if j0 <= j)
            it = max(P1 + j - c.la_a, a_it[seg])
            if j >= 8 and j < 24: it = max(it, P1)
            if j >= 24: it = max(it, P1 + j - 24 + 1)
            g0 = max(cur, G(it))
            dead = G(P1 + j) - 1
            g1 = min(g0 + (1 if (g0 >= G(P1)) else 2), dead)
            g0 = min(g0, g1)
            fill.append((self.a_load(j), g0, g1)); cur = g1 + 1 if seg != 28 else g1
        tagld = I(f"buffer_load_dword v{vTG}, off, {srd(S_DBG)}, 0 sc1", cost=8)
        bl = lambda b: 32 * b
        if A:
            fill.append(([tagld], G(40), G(40)))
            fill.append((self.a_block1(), G(32), G(64) - 1))
            bar21 = [b for b in self.bar if self.bar[b] == "b2_1"][0]
            fill.append((self.a_vepi(), G(64) + 3, G(bar21) - 1))
            fill.append(([self.tag_check()] + self.a_kv(), G(bar21), G(bar21) + 15))
            fill.append((self.flag(1, "kv") + self.stamp("kvflag"), G(bar21) + 40, G(bar21) + 40))
            e = self.h_epi(ACX, sAF4, 16, 0, "h0") + self.h_epi(ACX + 16, sAF4, 16, 1, "h0")
            fill.append((e, G(96) + 2, G(P1) + 8))
            fill.append((self.h_epi(ACY, sAF2, 24, 0, "h1"), G(P1) + 9, G(P1) + 28))
            fill.append((self.flag(2, "h0"), G(P1) + 24, G(P1) + 24))
            fill.append((self.flag(3, "h1"), G(P1) + 40, G(P1) + 40))
            assert G(P1) + 24 < G(P1 + c.chk_a0) and G(P1) + 40 < G(P1 + c.chk_a1)
        else:
            fill.append(([tagld], G(40), G(40)))
            e = self.gate_fin() + self.h_epi(ACX, sAF4, 0, 0, "h0") + self.h_epi(ACX + 16, sAF4, 0, 1, "h0")
            fill.append((e, G(32) + 2, G(64) - 8))
            fill.append(([self.tag_check()] + self.flag(1, "h0"), G(64) + 12, G(64) + 12))
            e = self.h_epi(ACY, sAF4, 8, 0, "h1") + self.h_epi(ACY + 16, sAF4, 8, 1, "h1")
            fill.append((e, G(64) + 2, G(96) - 8))
            fill.append((self.flag(2, "h1"), G(96) + 12, G(96) + 12))
            assert G(96) + 12 < G(P1 + c.chk_b1) and k2o(c) + 12 < c.chk_o
            kp = P1 + c.kv_poll
            q = self.b_qepi()
            fill.append((q, G(P1) + 2, G(kp + c.poll_lead) - 1))
            fill.append(([I(f"buffer_load_dword v{vTG}, v{vKPA}, {srd(S_WS)}, 0 offen sc1", cost=8)], G(kp), G(kp)))
            k2 = kp + c.poll_lead
            chk = self.poll_check_kv()
            fill.append(([chk] + self.stamp("chk_kv") + self.b_gather_loads(), G(k2), G(k2 + 2) - 1))
            fill.append((self.b_gather_sum() + self.b_o() + self.stamp("ostore"), G(k2 + 5), G(k2 + 9) - 1))
            fill.append((self.flag(3, "o") + self.stamp("oflag"), G(k2 + 12), G(k2 + 12)))
        p.add(merge(prim, fill))
        p.add(self.stamp("mend"))
        p.add(self.final())
        if c.diag:
            p.add(["s_waitcnt vmcnt(0)"] + self.stamp("end"))
            p.add([f"s_lshl_b32 s{sT1}, s2, 2", f"s_add_u32 s{sT1}, s{sT1}, s{sW}", f"s_lshl_b32 s{sT1}, s{sT1}, 6", f"s_add_u32 s{sT1}, s{sT1}, {STAMP}",
                   f"v_mov_b32 v{vT}, s{sT1}", "s_mov_b64 exec, 1"])
            p.add([f"v_mov_b32 v4, s48", f"buffer_store_dword v4, v{vT}, {srd(S_WS)}, 0 offen"])
            for k in range(self.nstamp):
                p.add([f"v_mov_b32 v4, s{sSTAMP+2*k}", f"buffer_store_dword v4, v{vT}, {srd(S_WS)}, 0 offen offset:{4*k+4}"])
            p.add([f"v_mov_b32 v4, s{sSPIN}", f"buffer_store_dword v4, v{vT}, {srd(S_WS)}, 0 offen offset:60"])
        p.add("s_endpgm")

    def poll_check_kv(self):
        lab = "B_kv"
        chk = [f"v_subrev_u32 v{vPT}, s{sT1}, v{vTG}", f"v_cmp_gt_u32 vcc, 7, v{vPT}", f"s_andn2_b32 s{sT2}, 0xffff, vcc_lo"]
        def side(p):
            q = Prog()
            q.add([f"L_retry_{lab}:", f"s_add_u32 s{sSPIN}, s{sSPIN}, 1", f"s_cmp_gt_u32 s{sSPIN}, 0x40000", "s_cbranch_scc1 L_end",
                   f"buffer_load_dword v{vTG}, v{vKPA}, {srd(S_WS)}, 0 offen sc1", "s_waitcnt vmcnt(0)"])
            q.vm_done = q.vm_n
            q.add(chk + [f"s_cbranch_scc1 L_retry_{lab}", "s_nop 1", f"s_branch L_back_{lab}"])
            self.side.append(q.text())
        return Atom([f"s_add_u32 s{sT1}, s{sTAG}, 1"] + chk + [f"s_cbranch_scc1 L_retry_{lab}", f"L_back_{lab}:", Call(side)])


def prologue(cfg):
    p = Prog()
    if cfg.diag: p.add(["s_memtime s[86:87]" if cfg.cyc else "s_memrealtime s[86:87]"])
    p.add(["s_cmp_ge_u32 s2, 256", "s_cbranch_scc1 L_end"])
    for s, off in ((S_X, 0), (S_WQ, 8), (S_W1, 40), (S_WS, 88), (S_GATE, 64), (S_WPHI, 16), (S_B1, 48)):
        p.add(f"s_load_dwordx2 s[{s}:{s+1}], s[0:1], {off}")
    p.add(["s_getpc_b64 s[48:49]", f"v_lshrrev_b32 v{vT}, 6, v0", f"v_and_b32 v{vL}, 63, v0", f"s_lshr_b32 s{sT1}, s2, 3",
           f"v_readfirstlane_b32 s{sW}, v{vT}", f"v_lshlrev_b32 v{vL16}, 4, v{vL}", "s_and_b32 s48, s48, 0xffffff00",
           f"s_lshl2_add_u32 s{sT2}, s{sT1}, s{sW}", f"s_and_b32 s{sT2}, s{sT2}, 63", f"s_min_u32 s{sT2}, s{sT2}, {cfg.code_kb-1}",
           f"s_lshl_b32 s{sT2}, s{sT2}, 10", f"s_add_u32 s48, s48, s{sT2}", "s_addc_u32 s49, s49, 0",
           f"v_mov_b32 v5, s49", f"v_add_co_u32 v4, vcc, s48, v{vL16}", "v_addc_co_u32 v5, vcc, 0, v5, vcc",
           f"global_load_dwordx4 {vr(TMP)}, v[4:5], off"])
    p.add([f"s_and_b32 s{sT2}, s2, 7",
           f"s_lshr_b32 s{sRB}, s{sT2}, 2", f"s_lshl_b32 s{sRB}, s{sRB}, 3", f"s_lshr_b32 s{sT3}, s{sT1}, 2", f"s_add_u32 s{sRB}, s{sRB}, s{sT3}",
           f"s_and_b32 s{sCG}, s{sT2}, 3", f"s_and_b32 s{sT3}, s{sT1}, 3", f"s_lshl2_add_u32 s{sCG}, s{sCG}, s{sT3}", f"s_lshr_b32 s{sHG}, s{sCG}, 1",
           f"s_lshr_b32 s{sT3}, s{sT1}, 3", f"s_lshl2_add_u32 s{sRB2}, s{sT2}, s{sT3}", f"s_and_b32 s{sCB}, s{sT1}, 7",
           f"s_lshl2_add_u32 s{sXO}, s{sRB}, s{sW}", f"s_lshl_b32 s{sXO}, s{sXO}, 15",
           f"s_lshl_b32 s{sL2K}, s{sW}, 11", f"s_lshl_b32 s{sL4K}, s{sW}, 12", f"s_or_b32 s{sLEAD}, s2, s{sW}"])
    sizes = {S_X: 2048*1024, S_WQ: 512*3072, S_W1: 512*3584, S_WS: WS_BYTES + (0x20000 if cfg.diag else 0), S_GATE: 1024, S_WPHI: 16384, S_B1: 3584,
             S_W2: 1792*1024, S_WO: 512*1024, S_OUT: 2048*1024, S_DBG: 256}
    for s in (S_X, S_WQ, S_W1, S_WS, S_GATE, S_WPHI, S_B1): p.add([f"s_mov_b32 s{s+2}, {sizes[s]}", f"s_mov_b32 s{s+3}, 0x20000"])
    p.add([f"v_lshrrev_b32 v62, 3, v{vL}", f"v_and_b32 v61, 7, v{vL}", f"v_lshrrev_b32 v{vT}, 4, v{vL}",
           f"v_xor_b32 v{vXG}, v61, v{vT}", f"v_lshlrev_b32 v{vXG}, 4, v{vXG}", f"v_lshl_add_u32 v{vXG}, v62, 10, v{vXG}",
           f"v_xor_b32 v{vXG+1}, 64, v{vXG}", f"v_add_u32 v{vXG+1}, 7168, v{vXG+1}", f"v_add_u32 v{vXG+2}, {2*7168}, v{vXG}", f"v_add_u32 v{vXG+3}, {2*7168}, v{vXG+1}",
           f"v_and_b32 v{vT}, 1, v{vT}", f"v_lshlrev_b32 v{vT}, 2, v{vT}", f"v_xor_b32 v63, v61, v{vT}", "v_lshlrev_b32 v63, 4, v63",
           "s_waitcnt lgkmcnt(0)"])
    if cfg.diag: p.add("s_mov_b32 s48, s86")
    for s, off in ((S_W2, 56), (S_WO, 24), (S_OUT, 72), (S_DBG, 80)):
        p.add([f"s_load_dwordx2 s[{s}:{s+1}], s[0:1], {off}", f"s_mov_b32 s{s+2}, {sizes[s]}", f"s_mov_b32 s{s+3}, 0x20000"])
    p.add([f"s_cmp_lg_u32 s{sLEAD}, 0", "s_cbranch_scc1 L_nolead", f"v_lshlrev_b32 v{vT}, 7, v{vL}"])
    for k in range(4):
        p.out += [f"    s_mov_b32 s{sT3}, {k*8192}", f"    buffer_load_dwordx4 {vr(TMP+32+4*k)}, v{vT}, {srd(S_WS)}, s{sT3} offen sc1"]
    p.add(["L_nolead:", f"s_bitcmp1_b32 s{sCG}, 0", "s_cbranch_scc1 L_typeB"])
    return p


def generate(cfg):
    side = []
    p0 = prologue(cfg)
    texts, info = [p0.text()], []
    for typ in ("A", "B"):
        p = p0.fork()
        g = Gen(typ, cfg, side)
        if typ == "B": p.add("L_typeB:")
        g.body(p)
        texts.append(p.text())
        info.append((typ, p.count, p.nops, p.issue, g.report, g.stamps))
    if cfg.diag: texts[0] = ("; cyc\n" if cfg.cyc else "") + "; stamps A " + ",".join(info[0][5]) + "\n; stamps B " + ",".join(info[1][5]) + "\n" + texts[0]
    hdr = open(__file__.replace("gen.py", "header.txt")).read()
    s = hdr + f"; @launch grid=(256,1,1) block=(256,1,1) lds=163840\n"
    s += f'.amdgcn_target "amdgcn-amd-amdhsa--gfx950"\n.text\n.globl {KN}\n.p2align 8\n.type {KN},@function\n{KN}:\n'
    s += "\n".join(texts) + "\n" + "\n".join(side) + "\nL_end:\n    s_endpgm\n"
    s += f".if (. - {KN}) > {cfg.code_kb*1024}\n.error \"code_kb too small\"\n.endif\n"
    s += f".fill ({cfg.code_kb*1024} - (. - {KN})) / 4, 4, 0xbf800000\n    s_endpgm\n"
    s += f""".section .rodata,"a"
.p2align 6
.amdhsa_kernel {KN}
  .amdhsa_next_free_vgpr 512
  .amdhsa_next_free_sgpr 102
  .amdhsa_accum_offset 256
  .amdhsa_group_segment_fixed_size 0
  .amdhsa_kernarg_size 96
  .amdhsa_user_sgpr_count 2
  .amdhsa_user_sgpr_kernarg_segment_ptr 1
  .amdhsa_system_sgpr_workgroup_id_x 1
.end_amdhsa_kernel
"""
    return s, info


if __name__ == "__main__":
    cfg = Cfg()
    out = None
    for a in sys.argv[1:]:
        if "=" in a:
            k, v = a.split("=", 1)
            setattr(cfg, k, type(getattr(cfg, k))(int(v)) if not isinstance(getattr(cfg, k), str) else v)
        else: out = a
    s, info = generate(cfg)
    open(out or f"cdna_kernels/{NAME}.s", "w").write(s)
    for typ, cnt, nops, issue, rep, st in info:
        print(typ, cnt, "nops", nops, "issue", issue)
        print("   ", " ".join(f"{j}@{ch}:{g0}+{lead}" for j, ch, g0, lead in rep))
```

```python
import re

TRANS = ("v_exp_f32", "v_log_f32", "v_rcp_f32", "v_rsq_f32", "v_sqrt_f32")
REG_RE = re.compile(r"^-?\|?(?:abs\()?([vas])(\d+|\[(\d+):(\d+)\])\)?\|?$")


def regs_of(tok):
    tok = tok.strip()
    if tok in ("vcc", "exec"):
        return [(tok, 0), (tok, 1)]
    if tok in ("vcc_lo", "exec_lo"):
        return [(tok[:-3], 0)]
    if tok in ("vcc_hi", "exec_hi"):
        return [(tok[:-3], 1)]
    if tok == "m0":
        return [("m0", 0)]
    m = REG_RE.match(tok)
    if not m:
        return []
    if m.group(3) is not None:
        return [(m.group(1), i) for i in range(int(m.group(3)), int(m.group(4)) + 1)]
    return [(m.group(1), int(m.group(2)))]


class I:
    def __init__(self, text, tag=None, cost=None):
        self.text = text
        self.tag = tag
        mn, _, rest = text.partition(" ")
        self.mn = mn
        ops = [o.strip() for o in rest.split(",")] if rest.strip() else []
        mods = ""
        if ops:
            last = ops[-1].split()
            ops[-1] = last[0]
            mods = " ".join(last[1:])
        self.ops, self.mods = ops, mods
        R = lambda lst: [r for o in lst for r in regs_of(o)]
        self.srcc = []
        self.passes = 0
        self.wide_store = False
        self.async_dst = False
        if mn.startswith("v_mfma"):
            self.kind = "mfma"
            self.w = R(ops[:1]); self.ab = R(ops[1:3]); self.srcc = R(ops[3:4]); self.r = self.ab + self.srcc
            self.passes = 8 if "32x32" in mn else 4
        elif mn.startswith("v_"):
            self.kind = "trans" if mn.startswith(TRANS) else "valu"
            if mn.startswith("v_permlane"):
                self.w = R(ops[:2]); self.r = R(ops[:2])
            elif mn.startswith(("v_add_co", "v_addc_co", "v_sub_co")):
                self.w = R(ops[:2]); self.r = R(ops[2:])
            else:
                self.w = R(ops[:1]); self.r = R(ops[1:])
                if mn.startswith(("v_fmac", "v_dot2c")):
                    self.r += self.w
        elif mn.startswith("ds_"):
            self.kind = "ds"
            if mn.startswith("ds_read"):
                self.w = R(ops[:1]); self.r = R(ops[1:]); self.async_dst = True
            else:
                self.w = []; self.r = R(ops)
        elif mn.startswith(("buffer_", "global_")):
            self.kind = "vmem"
            lds = " lds" in (" " + mods)
            self.lds = lds
            if "load" in mn and not lds:
                self.w = R(ops[:1]); self.r = R(ops[1:]); self.async_dst = True
            else:
                self.w = []; self.r = R(ops)
                if lds:
                    self.r.append(("m0", 0))
                if mn.endswith(("dwordx4", "dwordx3")) and "store" in mn:
                    self.wide_store = True
                    self.sdata = R(ops[:1]) if mn.startswith("buffer") else R(ops[1:2])
        elif mn.startswith("s_load") or mn in ("s_memtime", "s_memrealtime"):
            self.kind = "smem"
            self.w = R(ops[:1]); self.r = R(ops[1:])
        elif mn in ("s_waitcnt", "s_barrier", "s_nop", "s_endpgm", "s_sleep", "s_setprio") or mn.startswith(("s_branch", "s_cbranch")):
            self.kind = "ctl"; self.w = []; self.r = []
            if "vcc" in mn:
                self.r = [("vcc", 0), ("vcc", 1)]
        elif mn.startswith("s_cmp"):
            self.kind = "salu"; self.w = []; self.r = R(ops)
        elif mn.startswith("s_"):
            self.kind = "salu"; self.w = R(ops[:1]); self.r = R(ops[1:])
            if "saveexec" in mn:
                self.w += [("exec", 0), ("exec", 1)]
        else:
            raise ValueError("unknown instruction: " + text)
        if cost is None:
            cost = {"trans": 8, "mfma": 8}.get(self.kind, 4)
        self.cost = cost

    def states(self):
        if self.mn == "s_nop":
            return int(self.ops[0]) + 1
        return 1


class WaitVM:
    cost = 2
    def __init__(self, tag): self.tag = tag


class WaitLGKM0:
    cost = 2


class Raw:
    cost = 0
    def __init__(self, text): self.text = text


class Call:
    cost = 0
    def __init__(self, fn, cost=0): self.fn = fn; self.cost = cost


def need_states(p, c):
    n = 0
    pw = set(p.w)
    isv = p.kind in ("valu", "trans")
    cisv = c.kind in ("valu", "trans")
    if isv:
        vw = {r for r in pw if r[0] in "va"}
        sw = {r for r in pw if r[0] in ("s", "vcc")}
        if c.kind == "mfma" and vw & set(c.r): n = max(n, 2)
        if c.mn.startswith("v_permlane") and vw & set(c.r): n = max(n, 2)
        if "row_" in c.mods and vw & set(c.r): n = max(n, 2)
        if c.mn.startswith(("v_readlane", "v_readfirstlane")) and vw & set(c.r): n = max(n, 1)
        if p.kind == "trans" and c.kind != "trans" and vw & set(c.r): n = max(n, 1)
        if sw & set(c.r):
            if cisv: n = max(n, 4 if c.mn.startswith(("v_readlane", "v_writelane")) else 2)
            elif c.kind == "vmem": n = max(n, 5)
            else: n = max(n, 1)
    if p.kind == "mfma":
        big = p.passes == 8
        if c.kind == "mfma":
            if pw & set(c.ab): n = max(n, 12 if big else 8)
            if pw & set(c.srcc):
                if not (c.srcc == p.w and c.passes == p.passes): n = max(n, 10 if big else 6)
            elif pw & set(c.w) and not (c.w == p.w and c.passes == p.passes):
                n = max(n, 10 if big else 6)
        elif c.kind in ("valu", "trans", "ds", "vmem"):
            if pw & (set(c.r) | set(c.w)): n = max(n, 12 if big else 8)
            if cisv and set(p.srcc) & set(c.w): n = max(n, 7 if big else 3)
    if p.kind == "salu" and ("m0", 0) in pw and c.kind == "vmem" and ("m0", 0) in c.r: n = max(n, 1)
    if p.wide_store and set(p.sdata) & set(c.w): n = max(n, 2)
    return n


class Prog:
    def __init__(self):
        self.out = []
        self.hist = []
        self.vm_n = 0
        self.vm_done = 0
        self.vm_tag = {}
        self.vm_reg = {}
        self.ds_n = 0
        self.ds_done = 0
        self.ds_reg = {}
        self.nops = 0
        self.count = {}
        self.issue = 0

    def fork(self):
        p = Prog()
        p.hist = list(self.hist)
        p.vm_n, p.vm_done, p.vm_tag, p.vm_reg = self.vm_n, self.vm_done, dict(self.vm_tag), dict(self.vm_reg)
        p.ds_n, p.ds_done, p.ds_reg = self.ds_n, self.ds_done, dict(self.ds_reg)
        return p

    def _put(self, ins):
        self.out.append("    " + ins.text)
        self.hist.append(ins)
        if len(self.hist) > 24: self.hist.pop(0)
        self.count[ins.kind] = self.count.get(ins.kind, 0) + 1
        self.issue += ins.cost if ins.mn != "s_nop" else 4 * ins.states()

    def _wait(self, vm=None, lg=None):
        parts = []
        if vm is not None and vm >= self.vm_done:
            n = self.vm_n - 1 - vm
            if n <= 63:
                parts.append(f"vmcnt({n})")
            self.vm_done = vm + 1
        if lg is not None and lg >= self.ds_done:
            n = min(self.ds_n - 1 - lg, 15)
            parts.append(f"lgkmcnt({n})")
            self.ds_done = self.ds_n - n
        if parts:
            self._put(I("s_waitcnt " + " ".join(parts)))

    def wait_all_vm(self):
        if self.vm_n > self.vm_done: self._wait(vm=self.vm_n - 1)

    def add(self, x):
        if isinstance(x, str):
            x = Raw(x) if (x.endswith(":") or x.startswith((".", ";"))) else I(x)
        if isinstance(x, (list, tuple)):
            for y in x: self.add(y)
            return
        if isinstance(x, Atom):
            for y in x.items: self.add(y)
            return
        if isinstance(x, Raw):
            self.out.append(x.text); return
        if isinstance(x, Call):
            x.fn(self); return
        if isinstance(x, WaitVM):
            self._wait(vm=self.vm_tag[x.tag]); return
        if isinstance(x, WaitLGKM0):
            if self.ds_n > self.ds_done: self._wait(lg=self.ds_n - 1)
            return
        ins = x
        touched = set(ins.r) | set(ins.w)
        vm = max([self.vm_reg[r] for r in touched if r in self.vm_reg], default=None)
        lg = max([self.ds_reg[r] for r in touched if r in self.ds_reg], default=None)
        self._wait(vm=vm, lg=lg)
        dist, pad = 0, 0
        for p in reversed(self.hist):
            n = need_states(p, ins)
            if n > dist: pad = max(pad, n - dist)
            dist += p.states()
        while pad > 0:
            k = min(pad, 16)
            self._put(I(f"s_nop {k-1}")); self.nops += k; pad -= k
        self._put(ins)
        if ins.kind == "vmem":
            seq = self.vm_n; self.vm_n += 1
            if ins.tag: self.vm_tag[ins.tag] = seq
            if ins.async_dst:
                for r in ins.w: self.vm_reg[r] = seq
        elif ins.kind == "ds":
            seq = self.ds_n; self.ds_n += 1
            if ins.async_dst:
                for r in ins.w: self.ds_reg[r] = seq

    def text(self):
        return "\n".join(self.out)


def cost_of(lst):
    return sum(getattr(x, "cost", 4) if not isinstance(x, str) else I(x).cost for x in lst)


def norm(lst):
    out = []
    for x in lst:
        if isinstance(x, (list, tuple)): out += norm(x)
        elif isinstance(x, str): out.append(Raw(x) if (x.endswith(":") or x.startswith((".", ";"))) else I(x))
        else: out.append(x)
    return out


class Atom:
    def __init__(self, items):
        self.items = norm(items)
        self.cost = sum(x.cost for x in self.items)


class Gap:
    cost = 0


def is_mem(atom):
    for x in atom.items:
        if isinstance(x, I) and x.kind in ("ds", "vmem"): return True
        if isinstance(x, I) and x.kind in ("valu", "trans", "mfma"): return False
    return False


def merge(primary, fillers):
    primary = norm(primary)
    ngaps = sum(1 for x in primary if isinstance(x, Gap))
    st = []
    for items, g0, g1 in fillers:
        items = [x if isinstance(x, Atom) else Atom([x]) for x in norm(items)] if items else []
        g1 = min(g1, ngaps - 1); g0 = min(g0, g1)
        st.append([items, g0, g1, sum(a.cost for a in items), 0, 0])
    out, g = [], 0
    for x in primary:
        if not isinstance(x, Gap):
            out.append(x); continue
        for phase in (0, 1):
            for s in st:
                items, g0, g1, total, pos, done = s
                if g < g0: continue
                last = g >= g1
                target = total * (g - g0 + 1) / (g1 - g0 + 1) if not last else total + 1
                while pos < len(items) and done + items[pos].cost / 2 <= target:
                    mem = is_mem(items[pos]) or not any(isinstance(y, I) and y.kind != "salu" for y in items[pos].items)
                    if phase == 0 and not mem: break
                    if phase == 1 and is_mem(items[pos]) and not last: break
                    out += items[pos].items; done += items[pos].cost; pos += 1
                s[4], s[5] = pos, done
        for s in st:
            items, g0, g1, total, pos, done = s
            if pos >= len(items) or g + 1 < g0 or not is_mem(items[pos]): continue
            if g + 1 < g1 and done + items[pos].cost / 2 > total * (g + 1 - g0 + 1) / (g1 - g0 + 1): continue
            it = items[pos].items
            while isinstance(it[0], I) and it[0].kind == "salu" and ("exec", 0) not in it[0].w:
                out.append(it.pop(0))
        g += 1
    for s in st:
        assert s[4] == len(s[0]), "filler left over"
    return out
```

```python
import sys
from asmlib import *

NAME = "gated_mix__linear_kernel_hedgehog__dense_activation_mish__prompt"
KN = NAME + "_kernel"

FLAGS, ZP, KVP, AF = 0, 0x10000, 0x20000, 0x100000
RT_STRIDE = 144 * 1024
WS_BYTES = 0xA00000
STAMP = 0xA00000
CH = 16384
MISC = 9 * CH
GATE_L, WPHI_L, KVT_L, ZERO_L = MISC, MISC + 2048, MISC + 4096, MISC + 12288
RED_STRIDE = 272
RED_PART = 64 * RED_STRIDE
S_X, S_WQ, S_W1, S_W2, S_WO, S_WS, S_OUT, S_DBG, S_WPHI, S_B1, S_GATE = 4, 8, 12, 16, 20, 24, 28, 32, 36, 40, 44
sRHO2 = 3
sW, sRB, sCG, sHG, sRB2, sCB, sRHO, sLEAD = 50, 51, 52, 53, 54, 55, 56, 57
sL2K, sL4K = 58, 59
sOX, sO1, sO2, sKA, sKB, sOH = 60, 68, 76, 84, 92, 100
sT1, sT2, sT3 = 48, 49, 47
sTG1, sLOG, sP, sSPIN, sTD, sTA, sTG, sST = 36, 39, 40, 41, 42, 43, 44, 0
vL, vL16, vT, vPT = 0, 1, 2, 3
vXG, vWG0, vWG1, vWG2, vWGH = 4, 8, 10, 12, 14
vW2G, vAL = 18, 28
vWR, vW2R, vHR = 38, 44, 50
vGR, vG, vC, vM2C, vPA, vKPA, vPD, vFA, vFV, vTG, vST = 53, 54, 55, 56, 57, 58, 59, 60, 61, 62, 63
vAS = 4
vKXW, vKXP, vKXV, vKVST, vZST = 148, 151, 152, 153, 154
vZLD, vKVT, vKVL = 50, 51, 52
ACX, ACY, AC2, TMP = 64, 96, 128, 192
vXR, vWPR = 160, 172
aX, aWF, aC0, aC1, aWPHI, aBIAS, aONE = 0, 128, 160, 164, 168, 176, 186
aKV = 64
LOG2E = "0x3fb8aa3b"
SEG0 = [0, 8, 16, 24, 28]


def srd(n): return f"s[{n}:{n+3}]"
def vr(n, k=4): return f"v[{n}:{n+k-1}]"
def ar(n, k=4): return f"a[{n}:{n+k-1}]"
def win(base, stride, off): return base + stride * (off >> 16), off & 0xffff
def seg_of(j): return max(i for i in range(5) if SEG0[i] <= j)


class Cfg:
    diag = False
    cyc = False
    la = 2
    nfirst = 3
    pace0 = 4
    pace = 6
    pace2 = 4
    la_a = 8
    apace = 2
    poll_lead = 3
    A_chk = "-30,0,10,14,24"
    B_chk = "-6,2,10,14,24"
    a_e0 = -1
    a_e1 = 8
    a_f0 = 10
    a_f1 = 26
    a_kvn = 8
    a_kvf = 32
    b_e0 = 8
    b_e1 = 14
    b_f0 = 12
    b_qf = 25
    b_qp = 25
    b_qk = 60
    b_q0 = 60
    b_qn = 5
    b_sn = 2
    b_sg = 2
    b_on = 10
    b_of = 20
    late_pct = 100
    out_flags = ""
    pre = 2
    pre1_gap = -1
    pre2_gap = 50
    late_end = 30
    a_b0 = 2
    rot = 3
    map = 0
    drop = ""
    code_kb = 46
    stamps = ""


class Step:
    def __init__(self, reads, mfmas, stage, p2=False):
        self.reads, self.mfmas, self.stage, self.p2 = reads, mfmas, stage, p2


class Gen:
    def __init__(self, typ, cfg, side):
        self.typ, self.cfg, self.side = typ, cfg, side
        self.stamps = []

    def plan(self):
        c, A = self.cfg, self.typ == "A"
        stages = []
        for a in range(8): stages.append((f"c{a}", 4 * a, 4, [f"x{a}", f"s{a}"]))
        s = 32
        for b in (1, 2):
            for k in range(4): stages.append((f"b{b}_{k}", s, 8, [f"w{b}_{k}"])); s += 8
        if A:
            for k in range(2): stages.append((f"h{k}", s, 16, [f"w3_{k}"])); s += 16
        self.p1 = s
        for g in range(18): stages.append((f"g{g}", s + 2 * g, 2, [f"g{g}"]))
        self.nsteps = s + 36
        self.stages = stages
        self.rd_it = [max(0, i - c.la) for i in range(self.nsteps)]
        self.bar = {}
        for name, f, n, jobs in stages:
            if f < self.p1: self.bar[self.rd_it[f]] = name
        self.bar[self.p1 + 1] = "end1"
        bars = sorted(self.bar)
        def free_it(name, f, n):
            last = f + n - 1
            if f >= self.p1: return last + 1
            if f < 32: return min(b for b in bars if b > self.rd_it[last])
            return min(b for b in bars if b > last)
        order = []
        for a in range(8): order += [f"x{a}"] + ([f"s{a}"] if a % 2 == 0 else [])
        order += [f"w1_{k}" for k in range(4)]
        if A: order += ["P0", "P1"]
        order += [f"w2_{k}" for k in range(2)]
        if A: order += ["V"]
        order += [f"w2_{k}" for k in range(2, 4)]
        if A: order += ["w3_0", "w3_1"]
        order += [f"g{g}" for g in range(18)]
        rel = {}
        for name, f, n, jobs in stages:
            for j in jobs:
                if j.startswith("s"):
                    if int(j[1:]) % 2: rel[f"s{int(j[1:])-1}"] = free_it(name, f, n)
                else: rel[j] = free_it(name, f, n)
        if A:
            rel["P0"] = rel["P1"] = rel["V"] = [b for b in bars if self.bar[b] == "b2_3"][0]
        chunk, avail = {}, {}
        free = [(0, k) for k in range(9)]
        for j in order:
            free.sort()
            t, k = free.pop(0)
            chunk[j], avail[j] = k, t
            free.append((rel[j], k))
        for a in range(1, 8, 2): chunk[f"s{a}"], avail[f"s{a}"] = chunk[f"s{a-1}"], avail[f"s{a-1}"]
        if A: assert avail["P0"] <= 32 and avail["P1"] <= 32 and avail["V"] <= 64
        self.chunk, self.avail, self.order = chunk, avail, order

    def dma_job(self, j):
        A = self.typ == "A"
        base = self.chunk[j] * CH
        def ops(n, vg, s, so, lbase, lo, calc=()):
            l = [Atom([f"s_add_u32 m0, s{lbase}, {lo}"] + list(calc) + [I(f"buffer_load_dwordx4 v{vg}, {srd(s)}, s{so} offen lds", tag=j, cost=10)])]
            for i in range(1, n):
                l.append(I(f"buffer_load_dwordx4 v{vg+i}, {srd(s)}, s{so} offen offset:{i*1024} lds", tag=j, cost=10))
            return l
        m1, m2 = (S_WQ, S_W1) if A else (S_W1, S_WQ)
        if j[0] == "x": return ops(4, vXG, S_X, sOX + int(j[1:]), sL4K, base)
        if j[0] == "s":
            a = int(j[1:])
            return ops(2, vWG0, m1, sO1 + a, sL2K, base + (a & 1) * 8192)
        if j[0] == "w":
            b, k = int(j[1]), int(j[3])
            if b == 3: return ops(4, vWGH, S_W1, sOH + k, sL4K, base)
            vg, m, so = (vWG1, m1, sO1) if b == 1 else (vWG2, m2, sO2)
            return ops(2, vg, m, so + 2 * k, sL2K, base) + ops(2, vg, m, so + 2 * k + 1, sL2K, base + 8192)
        l = []
        for jj in (2 * int(j[1:]), 2 * int(j[1:]) + 1):
            sg = seg_of(jj); i = jj - SEG0[sg]
            lo = base + (jj & 1) * 2048
            if sg < 3: l += ops(2, vW2G + 2 * sg, S_W2, sKB + i, sL4K, lo)
            elif sg == 3: l += ops(2, vW2G + 6, S_W2, sTD, sL4K, lo, [f"s_and_b32 s{sTD}, s{sKB+i}, 0xc000"])
            else: l += ops(2, vW2G + 8, S_WO, sTD, sL4K, lo, [f"s_lshl_b32 s{sTD}, s{sKA+i}, 4"])
        return l

    def a_slot(self, j):
        slots = [192 + 8 * i for i in range(8)] + [8 * i for i in range(16)]
        return slots[j % len(slots)]

    def a_load(self, j):
        sg = seg_of(j); i = j - SEG0[sg]
        so, calc = (sTA, [f"s_and_b32 s{sTA}, s{sKA+i}, 0xc00"]) if sg == 3 else (sKA + i, [])
        l = [I(f"buffer_load_dwordx4 {ar(self.a_slot(j)+4*rt)}, v{vAL+2*sg+rt}, {srd(S_WS)}, s{so} offen sc1", cost=10) for rt in range(2)]
        return [Atom(calc + [l[0]]), l[1]]

    def prefetch(self, items):
        l = []
        for s_, n in items:
            l.append(Atom([f"s_lshl2_add_u32 s{sT3}, s2, s{sW}", f"s_mul_i32 s{sT3}, s{sT3}, {n*128}", f"v_lshlrev_b32 v{TMP+4}, 7, v{vL}",
                           f"s_mov_b64 exec, {hex((1 << n) - 1)}", I(f"buffer_load_dword v{TMP+4+s_//4}, v{TMP+4}, {srd(s_)}, s{sT3} offen", cost=10), "s_mov_b64 exec, -1"]))
        return l

    def build_steps(self):
        A = self.typ == "A"
        steps = []
        def wfrag(i): return aWF + 8 * (i % 4)
        def trs(dst, reg, off, d2):
            return [f"ds_read_b64_tr_b16 {ar(dst,2)}, v{reg} offset:{off}", f"ds_read_b64_tr_b16 {ar(dst+2,2)}, v{reg} offset:{off+d2}"]
        def mf(acc, a, b, c): return f"v_mfma_f32_32x32x16_bf16 {vr(acc,16)}, {a}, {b}, {c}"
        accs = [ACX, ACY, ACX, ACY]
        bias_of = {("A", 2): 0, ("A", 3): 2, ("B", 0): 0, ("B", 1): 2}
        for b in range(4 if A else 3):
            acc = accs[b]
            nt = 1 if b == 3 else 2
            for s in range(32):
                i = len(steps)
                rd, mm = [], []
                if b == 0:
                    off = self.chunk[f"s{s>>2}"] * CH + (s & 7) * 2048; stage = f"c{s>>2}"
                elif b < 3:
                    off = self.chunk[f"w{b}_{s>>3}"] * CH + (s & 7) * 2048; stage = f"b{b}_{s>>3}"
                else:
                    off = self.chunk[f"w3_{s>>4}"] * CH + (s & 15) * 1024; stage = f"h{s>>4}"
                for t in range(nt):
                    if b < 3:
                        r, o = win(vWR + t, 2, off); rd += trs(wfrag(i) + 4 * t, r, o, 512)
                    else:
                        r, o = win(vHR, 1, off); rd += trs(wfrag(i), r, o, 256)
                if b == 0:
                    r, o = win(vXR + (s & 3), 4, self.chunk[f"x{s>>2}"] * CH)
                    rd += [f"ds_read_b128 {vr(AC2+4+4*(s&3))}, v{vGR} offset:{s*32}", f"ds_read_b128 {ar(aX+4*s)}, v{r} offset:{o}"]
                for t in reversed(range(nt)):
                    c = vr(acc + 16 * t, 16)
                    if s == 0:
                        if (self.typ, b) in bias_of:
                            mm.append(mf(acc + 16 * t, ar(aBIAS + 2 * (bias_of[(self.typ, b)] + t)), ar(aONE), "0"))
                        else: c = "0"
                    mm.append(mf(acc + 16 * t, ar(wfrag(i) + 4 * t), ar(aX + 4 * s), c))
                if b == 0:
                    mm.append(I(f"v_mfma_f32_16x16x32_bf16 {vr(AC2)}, {vr(AC2+4+4*(s&3))}, {ar(aX+4*s)}, {'0' if s == 0 else vr(AC2)}"))
                steps.append(Step(rd, mm, stage))
        for j in range(36):
            i = len(steps)
            off = self.chunk[f"g{j>>1}"] * CH + (j & 1) * 2048
            rd = []
            for t in range(2):
                r, o = win(vW2R + t, 2, off); rd += trs(wfrag(i) + 4 * t, r, o, 1024)
            mm = []
            for rt in (1, 0):
                for t in (1, 0):
                    acc = AC2 + 16 * (2 * rt + t)
                    mm.append(mf(acc, ar(wfrag(i) + 4 * t), ar(self.a_slot(j) + 4 * rt), "0" if j == 0 else vr(acc, 16)))
            steps.append(Step(rd, mm, f"g{j>>1}", True))
        self.steps = steps

    def gate_fin(self):
        return [f"v_permlane16_swap_b32 v{AC2}, v{AC2+1}", f"v_mul_f32 v{vG}, 0xbfb8aa3b, v{AC2}", f"v_exp_f32 v{vG}, v{vG}", f"v_add_f32 v{vG}, 1.0, v{vG}",
                f"v_rcp_f32 v{vG}, v{vG}", f"v_sub_f32 v{vC}, 1.0, v{vG}", f"v_mul_f32 v{vM2C}, -2.0, v{vC}"]

    def h_epi(self, acc, vas, slot, tag):
        W, O = TMP + 40, TMP + 48
        l = []
        for half in range(2):
            o = O + 4 * ((slot * 2 + half) & 3)
            for grp in range(2):
                e = [acc + 8 * half + 4 * grp + k for k in range(4)]
                w = [W + 4 * grp + k for k in range(4)]
                l += [f"v_mul_f32 v{w[k]}, s{sLOG}, v{e[k]}" for k in range(4)]
                l += [f"v_exp_f32 v{w[k]}, v{w[k]}" for k in range(4)]
                l += [f"v_add_f32 v{w[k]}, 1.0, v{w[k]}" for k in range(4)]
                l += [f"v_fma_f32 v{w[k]}, v{w[k]}, v{w[k]}, 1.0" for k in range(4)]
                l += [f"v_rcp_f32 v{w[k]}, v{w[k]}" for k in range(4)]
                l += [f"v_fma_f32 v{w[k]}, v{w[k]}, v{vM2C}, v{vC}" for k in range(4)]
                l += [f"v_mul_f32 v{w[k]}, v{e[k]}, v{w[k]}" for k in range(4)]
                l += [f"v_cvt_pk_bf16_f32 v{o+2*grp+k}, v{w[2*k]}, v{w[2*k+1]}" for k in range(2)]
            l.append(I(f"buffer_store_dwordx4 {vr(o)}, v{vas}, {srd(S_WS)}, 0 offen offset:{(2*slot+half)*1024} sc1", tag=tag, cost=10))
        return l

    def feat_head(self, acc):
        K = TMP + 32
        l = [f"v_cvt_pk_bf16_f32 v{K+i}, v{acc+2*i}, v{acc+2*i+1}" for i in range(16)]
        for t, D in ((0, TMP), (1, acc)):
            for hd in range(2):
                l.append(I(f"v_mfma_f32_32x32x16_bf16 {vr(D+16*hd,16)}, {ar(aWPHI+4*t)}, {vr(K+8*t+4*hd)}, 0", cost=32))
        return l

    def softmax(self, D, out):
        P = [D, D + 24]; E = [D + 8, D + 16]
        S = TMP + 48
        mx, mn = [S, S + 1], [S + 2, S + 3]
        sw = lambda a: I(f"v_permlane32_swap_b32 v{a[0]}, v{a[1]}", cost=8)
        l = []
        for k, (a, b) in enumerate(((0, None), (3, 4), (5, 6), (7, None))):
            for op, r in (("max", mx), ("min", mn)):
                for h in range(2):
                    p = P[h]
                    if k == 0: l.append(f"v_{op}3_f32 v{r[h]}, v{p}, v{p+1}, v{p+2}")
                    elif b is None: l.append(f"v_{op}_f32 v{r[h]}, v{r[h]}, v{p+a}")
                    else: l.append(f"v_{op}3_f32 v{r[h]}, v{r[h]}, v{p+a}, v{p+b}")
        l += [sw(mx), sw(mn), f"v_max_f32 v{mx[0]}, v{mx[0]}, v{mx[1]}", f"v_min_f32 v{mn[0]}, v{mn[0]}, v{mn[1]}",
              f"v_mul_f32 v{mx[1]}, s{sLOG}, v{mx[0]}", f"v_mul_f32 v{mx[0]}, s{sLOG}, v{mx[0]}",
              f"v_mul_f32 v{mn[1]}, s{sLOG}, v{mn[0]}", f"v_mul_f32 v{mn[0]}, s{sLOG}, v{mn[0]}", sw(mx), sw(mn)]
        for h in range(2):
            for g in range(2):
                idx = range(4 * g, 4 * g + 4)
                l += [f"v_fma_f32 v{E[h]+k}, v{P[h]+k}, -s{sLOG}, v{mn[h]}" for k in idx]
                l += [f"v_fma_f32 v{P[h]+k}, v{P[h]+k}, s{sLOG}, -v{mx[h]}" for k in idx]
                l += [f"v_exp_f32 v{E[h]+k}, v{E[h]+k}" for k in idx]
                l += [f"v_exp_f32 v{P[h]+k}, v{P[h]+k}" for k in idx]
        sp, sm = mx, mn
        for k in range(1, 8):
            for r, src in ((sp, P), (sm, E)):
                for h in range(2):
                    a = f"v{src[h]}" if k == 1 else f"v{r[h]}"
                    l.append(f"v_add_f32 v{r[h]}, {a}, v{src[h]+k}")
        l += [sw(sp), sw(sm), f"v_add_f32 v{sp[0]}, v{sp[0]}, v{sp[1]}", f"v_add_f32 v{sm[0]}, v{sm[0]}, v{sm[1]}",
              f"v_rcp_f32 v{sp[0]}, v{sp[0]}", f"v_rcp_f32 v{sm[0]}, v{sm[0]}",
              f"v_mov_b32 v{sp[1]}, v{sp[0]}", f"v_mov_b32 v{sm[1]}, v{sm[0]}", sw(sp), sw(sm)]
        post = []
        for h in range(2):
            for sg, (src, r) in enumerate(((P, sp), (E, sm))):
                q = [f"v_mul_f32 v{src[h]+k}, v{r[h]}, v{src[h]+k}" for k in range(8)]
                q += [f"v_cvt_pk_bf16_f32 v{out[2*h+sg]+k}, v{src[h]+2*k}, v{src[h]+2*k+1}" for k in range(4)]
                post.append(q)
        return l, post

    def flag(self, stage, tag):
        return [f"v_mov_b32 v{vFV}, {stage}",
                Atom([WaitVM(tag), "s_mov_b64 exec, 1", I(f"buffer_store_dword v{vFV}, v{vFA}, {srd(S_WS)}, 0 offen sc1", cost=10), "s_mov_b64 exec, -1"])]

    def spin(self, lab, load, chk):
        def side(p):
            q = Prog()
            q.add([f"L_retry_{lab}:", f"s_add_u32 s{sSPIN}, s{sSPIN}, 1", f"s_cmp_gt_u32 s{sSPIN}, 0x40000", "s_cbranch_scc1 L_end", load, "s_waitcnt vmcnt(0)"])
            q.vm_done = q.vm_n
            q.add(chk + [f"s_cbranch_scc1 L_retry_{lab}", "s_nop 1", f"s_branch L_back_{lab}"])
            self.side.append(q.text())
        return Atom(chk + [f"s_cbranch_scc1 L_retry_{lab}", f"L_back_{lab}:", Call(side)])

    def poll_load(self, vd, va): return f"buffer_load_dword v{vd}, v{va}, {srd(S_WS)}, 0 offen sc1"

    def poll_check(self, vd, va, need, mask, name):
        chk = [f"v_cmp_le_u32 vcc, {need}, v{vd}", f"s_andn2_b32 s{sT2}, {mask}, vcc_lo"]
        return self.spin(f"{self.typ}_{name}", self.poll_load(vd, va), chk)

    def tag_load(self): return f"buffer_load_dword v{vTG}, off, {srd(S_DBG)}, 0 sc1"

    def tag_check(self):
        chk = [f"v_readfirstlane_b32 s{sTG1}, v{vTG}", f"s_cmp_eq_u32 s{sTG1}, 0"]
        return [self.spin(self.typ + "_tag", self.tag_load(), chk)]

    def leader_clear(self):
        def side(p):
            q = Prog()
            q.add(["L_lead0:", f"v_lshl_add_u32 v{TMP+20}, s{sW}, 6, v{vL}", f"v_lshlrev_b32 v{TMP+20}, 7, v{TMP+20}"] + [f"v_mov_b32 v{TMP+32+k}, 0" for k in range(4)] +
                  [f"buffer_store_dwordx4 {vr(TMP+32)}, v{TMP+20}, {srd(S_WS)}, 0 offen sc1", "s_branch L_lead0_back"])
            self.side.append(q.text())
        return [Atom(["s_cmp_eq_u32 s2, 8", "s_cbranch_scc1 L_lead0", "L_lead0_back:", Call(side)])]

    def leader_go(self):
        def side(p):
            q = Prog()
            q.add(["L_lead2:", f"v_mov_b32 v{TMP+21}, 1", "s_mov_b64 exec, 1", f"buffer_store_dword v{TMP+21}, off, {srd(S_DBG)}, 0 sc1",
                   "s_mov_b64 exec, -1", "s_branch L_lead2_back"])
            self.side.append(q.text())
        return [Atom([f"s_cmp_eq_u32 s{sLEAD}, 0", "s_cbranch_scc1 L_lead2", "L_lead2_back:", Call(side)])]

    def stamp(self, name):
        if not self.cfg.diag or name not in self.cfg.stamps.split(","): return []
        self.stamps.append(name)
        def after(p): p.ds_done = p.ds_n
        return [Atom([f"{'s_memtime' if self.cfg.cyc else 's_memrealtime'} s[{sST}:{sST+1}]", "s_waitcnt lgkmcnt(0)", Call(after),
                      f"v_writelane_b32 v{vST}, s{sST}, {len(self.stamps)}"])]

    def a_block1(self):
        ch = self.chunk
        l = self.feat_head(ACX) + self.gate_fin()
        l += [f"v_accvgpr_write_b32 a{aC0+k}, s{sP}" for k in range(4)]
        O = [TMP + 32 + 4 * k for k in range(4)]
        for t, D in ((0, TMP), (1, ACX)):
            body, post = self.softmax(D, O)
            l += body
            for k, q in enumerate(post):
                r, o = win(vKXW, 1, ch[f"P{t}"] * CH + k * 4096)
                l += q + [I(f"ds_write_b128 v{r}, {vr(O[k])} offset:{o}", cost=24)]
        return l

    def a_vepi(self):
        l = []
        for hd in range(4):
            l += [f"v_cvt_pk_bf16_f32 v{TMP+4*hd+k}, v{ACY+8*hd+2*k}, v{ACY+8*hd+2*k+1}" for k in range(4)]
            r, o = win(vKXW, 1, self.chunk["V"] * CH + hd * 4096)
            l.append(I(f"ds_write_b128 v{r}, {vr(TMP+4*hd)} offset:{o}", cost=24))
        return l

    def a_kv(self):
        V, PH, D = TMP, TMP + 16, TMP + 48
        rd, mm = [], []
        for k in range(4):
            r = [f"ds_read_b64_tr_b16 {vr(V+4*k,2)}, v{vKXV} offset:{k*1024}", f"ds_read_b64_tr_b16 {vr(V+4*k+2,2)}, v{vKXV} offset:{k*1024+512}"]
            m = []
            for sg in range(2):
                q = PH + 16 * sg + 4 * k
                r += [f"ds_read_b64_tr_b16 {vr(q,2)}, v{vKXP} offset:{sg*4096+k*1024}", f"ds_read_b64_tr_b16 {vr(q+2,2)}, v{vKXP} offset:{sg*4096+k*1024+512}"]
            for sg in (1, 0):
                q = PH + 16 * sg + 4 * k
                m.append(I(f"v_mfma_f32_16x16x32_bf16 {vr(D+4*sg)}, {vr(V+4*k)}, {vr(q)}, {'0' if k == 0 else vr(D+4*sg)}", cost=16))
                m.append(I(f"v_mfma_f32_16x16x32_bf16 {vr(D+8+4*sg)}, {ar(aC0)}, {vr(q)}, {'0' if k == 0 else vr(D+8+4*sg)}", cost=16))
            rd.append(r); mm.append(m)
        l = rd[0] + rd[1] + rd[2] + mm[0] + rd[3] + mm[1] + mm[2] + mm[3]
        sw = lambda a, b: I(f"v_permlane16_swap_b32 v{a}, v{b}", cost=8)
        tail = [f"v_cvt_pk_bf16_f32 v{V+k}, v{D+2*k}, v{D+2*k+1}" for k in range(4)]
        tail += [sw(D + 8, D + 12), sw(V, V + 2), sw(V + 1, V + 3),
                 I(f"buffer_store_dword v{D+8}, v{vZST}, {srd(S_WS)}, 0 offen sc1", tag="kv", cost=10),
                 I(f"buffer_store_dwordx4 {vr(V)}, v{vKVST}, {srd(S_WS)}, 0 offen sc1", tag="kv", cost=10)]
        return l, tail

    def b_qepi(self):
        l = self.feat_head(ACX)
        for t, D in ((0, TMP), (1, ACX)):
            body, post = self.softmax(D, [ACY + 16 * t + 4 * k for k in range(4)])
            l += body
            for q in post: l += q
        return l

    def b_gather_loads(self):
        l = [I(f"buffer_load_dword v{TMP+56+k}, v{vZLD}, {srd(S_WS)}, 0 offen offset:{k*128} sc1", cost=10) for k in range(8)]
        for p in range(16):
            ld = I(f"buffer_load_dwordx4 {ar(aKV+4*p)}, v{vKVL}, {srd(S_WS)}, {'0' if p < 4 else f's{sTG}'} offen offset:{(p&3)*1024} sc1", cost=10)
            l.append(Atom([f"s_movk_i32 s{sTG}, {p*1024}", ld]) if p % 4 == 0 and p else ld)
        return l

    def b_gather_sum(self):
        Z, AZ = TMP + 56, TMP + 52
        mf = lambda a, b, c: I(f"v_mfma_f32_32x32x16_bf16 {vr(ACX,16)}, {a}, {b}, {c}", cost=32)
        v = [f"v_mov_b32 v{AZ+k}, 0" for k in range(1, 4)] + [f"v_lshl_add_u32 v{vT}, s{sW}, 11, v{vKVT}"]
        v += [f"v_add_f32 v{Z+2*k}, v{Z+2*k}, v{Z+2*k+1}" for k in range(4)]
        v += [f"v_add_f32 v{Z}, v{Z}, v{Z+2}", f"v_add_f32 v{Z+4}, v{Z+4}, v{Z+6}", f"v_add_f32 v{Z+1}, v{Z}, v{Z+4}", f"v_add_f32 v{Z}, v{Z}, v{Z+4}"]
        v += [None, f"v_permlane32_swap_b32 v{Z}, v{Z+1}", f"v_add_f32 v{Z}, v{Z}, v{Z+1}", f"v_cvt_pk_bf16_f32 v{AZ}, v{Z}, v{AZ+1}"]
        l = []
        for p in range(16):
            l.append(mf(ar(aKV + 4 * p), ar(aC0), "0" if p == 0 else vr(ACX, 16)))
            l += [x for x in v[3 * p:3 * p + 3] if x]
        l.append(mf(vr(AZ), ar(aC1), vr(ACX, 16)))
        tail = [f"v_cvt_pk_bf16_f32 v{TMP+k}, v{ACX+2*k}, v{ACX+2*k+1}" for k in range(8)]
        tail += [I(f"ds_write_b128 v{vT}, {vr(TMP)}", cost=24), I(f"ds_write_b128 v{vT}, {vr(TMP+4)} offset:1024", cost=24)]
        return l, tail

    def b_o(self):
        KT, W, O = TMP + 8, TMP + 40, TMP + 48
        rd = [f"ds_read_b128 {vr(KT+4*k)}, v{vKVT} offset:{k*1024}" for k in range(8)]
        def mm(hd):
            D = ACX + 16 * (hd & 1)
            return [I(f"v_mfma_f32_32x32x16_bf16 {vr(D,16)}, {vr(KT+8*hd)}, {vr(ACY+8*hd)}, 0", cost=32),
                    I(f"v_mfma_f32_32x32x16_bf16 {vr(D,16)}, {vr(KT+8*hd+4)}, {vr(ACY+8*hd+4)}, {vr(D,16)}", cost=32)]
        def fin(hd):
            D = ACX + 16 * (hd & 1); o = O + 4 * hd
            q = [f"v_add_f32 v{W}, 0x358637bd, v{D+8}", f"v_rcp_f32 v{W}, v{W}", f"v_mul_f32 v{W}, v{W}, v{vG}"]
            q += [f"v_mul_f32 v{D+k}, v{W}, v{D+k}" for k in range(8)]
            q += [f"v_cvt_pk_bf16_f32 v{o+k}, v{D+2*k}, v{D+2*k+1}" for k in range(4)]
            q.append(I(f"buffer_store_dwordx4 {vr(o)}, v{vAS+2}, {srd(S_WS)}, 0 offen offset:{hd*1024} sc1", tag="o", cost=10))
            return q
        return [Atom([WaitLGKM0(), "s_barrier"] + rd)] + mm(0) + mm(1) + fin(0) + mm(2) + fin(1) + mm(3) + fin(2) + fin(3)

    def final_addr(self):
        A0, A1, A2, A3 = 8, 9, 10, 11
        return [f"v_and_b32 v{vT}, 31, v{vL}", f"v_mul_u32_u24 v{A0}, {RED_STRIDE}, v{vT}", f"v_lshrrev_b32 v{vT}, 5, v{vL}", f"v_lshl_add_u32 v{A0}, v{vT}, 4, v{A0}",
                f"s_mul_i32 s{sT1}, s{sW}, {RED_PART}", f"v_add_u32 v{A0}, s{sT1}, v{A0}",
                f"v_lshrrev_b32 v{vT}, 3, v{vL}", f"v_lshl_add_u32 v{vT}, s{sW}, 4, v{vT}", f"v_mul_u32_u24 v{A1}, {RED_STRIDE}, v{vT}",
                f"v_and_b32 v{vT}, 7, v{vL}", f"v_lshl_add_u32 v{A1}, v{vT}, 5, v{A1}"]

    def final(self):
        A0, A1, vOUT = 8, 9, 7
        l = [WaitLGKM0(), "s_barrier"]
        for rt in (1, 0):
            for t in (1, 0):
                for q in range(4):
                    l.append(f"ds_write_b128 v{A0}, {vr(AC2+16*(2*rt+t)+4*q)} offset:{rt*32*RED_STRIDE + t*128 + q*32}")
        l += [f"s_movk_i32 s{sT1}, 8192", WaitLGKM0(), "s_barrier"]
        for p in range(2):
            for hf in range(2):
                for w in range(4):
                    l.append(f"ds_read_b128 {vr(TMP+32*p+16*hf+4*w)}, v{A1} offset:{w*RED_PART + p*8*RED_STRIDE + hf*16}")
        for p in range(2):
            for hf in range(2):
                b = TMP + 32 * p + 16 * hf
                l += [f"v_add_f32 v{b+k}, v{b+k}, v{b+4+k}" for k in range(4)]
                l += [f"v_add_f32 v{b+8+k}, v{b+8+k}, v{b+12+k}" for k in range(4)]
                l += [f"v_add_f32 v{b+k}, v{b+k}, v{b+8+k}" for k in range(4)]
                l += [f"v_cvt_pk_bf16_f32 v{12+4*p+2*hf+k}, v{b+2*k}, v{b+2*k+1}" for k in range(2)]
            l.append(f"buffer_store_dwordx4 {vr(12+4*p)}, v{vOUT}, {srd(S_OUT)}, {'0' if p == 0 else f's{sT1}'} offen {self.cfg.out_flags}".rstrip())
        return l

    def setup(self):
        A, c = self.typ == "A", self.cfg
        st1, st2 = (3072, 3584) if A else (3584, 3072)
        R8, C16 = 62, 61
        def rot(i, dst, mul): return [f"s_mul_i32 s{dst}, s{sOX+i}, {mul}"]
        l = []
        if A: l += [f"s_lshl_b32 s{sT1}, s{sHG}, 7", f"s_add_u32 s{sT1}, s{sT1}, 1024"]
        else: l += [f"s_lshl_b32 s{sT1}, s{sHG}, 8", f"s_add_u32 s{sT1}, s{sT1}, 1536"]
        l += [f"s_mul_i32 s{sT2}, s{sW}, {16*st1}", f"s_add_u32 s{sT2}, s{sT1}, s{sT2}", f"v_mul_u32_u24 v{vWG0}, {st1}, v{R8}",
              f"v_add3_u32 v{vWG0}, v{vWG0}, v{C16}, s{sT2}", f"v_add_u32 v{vWG0+1}, {8*st1-1024}, v{vWG0}"] + rot(0, sO1, st1 // 2) + rot(1, sO1 + 1, st1 // 2)
        first = [j for j in self.order if self.avail[j] == 0][:c.nfirst]
        seq = []
        for j in first:
            seq.append(j)
            if j[0] == "x" and int(j[1:]) % 2 == 1 and f"s{int(j[1:])-1}" in first: seq.append(f"s{j[1:]}")
        self.first = seq + [f"s{a}" for a in range(1, 8, 2) if f"s{a-1}" in first and f"s{a}" not in seq]
        l += self.dma_job(seq[0]) + self.dma_job(seq[1])
        BO = TMP + 16
        l += [f"s_lshl_b32 s{sT2}, s{sW}, 8", f"s_add_u32 m0, s{sT2}, {GATE_L}", "s_mov_b64 exec, 0xffff",
              I(f"buffer_load_dwordx4 v{vL16}, {srd(S_GATE)}, s{sT2} offen lds", tag="misc"),
              f"s_add_u32 m0, s{sT2}, {GATE_L+1024}", f"s_lshl_b32 s{sLEAD-1}, s{sHG}, 11" if False else "s_nop 0",
              I(f"buffer_load_dwordx4 v{vL16}, {srd(S_GATE)}, s{sT2} offen lds", tag="misc"),
              f"s_lshl_b32 s{sT2}, s{sW}, 9", f"s_add_u32 m0, s{sT2}, {WPHI_L}", f"s_lshl_b32 s{sT3}, s{sHG}, 11", f"s_add_u32 s{sT2}, s{sT2}, s{sT3}",
              "s_mov_b32 exec_lo, -1", I(f"buffer_load_dwordx4 v{vL16}, {srd(S_WPHI)}, s{sT2} offen lds", tag="misc"), "s_mov_b64 exec, -1",
              f"v_and_b32 v{BO}, 31, v{vL}", f"v_lshlrev_b32 v{BO}, 1, v{BO}", f"s_and_b32 s{sTG}, s{sHG}, 1"]
        sPAR = sTG
        if A:
            l += [f"s_mul_i32 s{sT1}, s{sHG}, 192", f"s_lshl_b32 s{sT2}, s{sPAR}, 6", f"s_add_u32 s{sOH}, s{sT1}, s{sT2}",
                  f"s_xor_b32 s{sT2}, s{sPAR}, 1", f"s_lshl_b32 s{sT2}, s{sT2}, 7", f"s_add_u32 s{sOH+1}, s{sT1}, s{sT2}",
                  f"buffer_load_ushort a{aBIAS}, v{BO}, {srd(S_B1)}, s{sOH} offen",
                  f"buffer_load_ushort a{aBIAS+2}, v{BO}, {srd(S_B1)}, s{sOH} offen offset:64",
                  f"buffer_load_ushort a{aBIAS+4}, v{BO}, {srd(S_B1)}, s{sOH+1} offen", f"v_accvgpr_write_b32 a{aBIAS+6}, 0"]
        else:
            l += [f"buffer_load_ushort a{aBIAS+2*t}, v{BO}, {srd(S_B1)}, s{sT1} offen offset:{64*t}" for t in range(4)]
            l += [f"s_lshl_b32 s{sOH}, s{sHG}, 7"]
        for i in range(2, 8): l += rot(i, sO1 + i, st1 // 2)
        if not A: l += self.leader_clear()
        head, l = l, []
        burst = []
        for n, j in enumerate(self.first[2:]): burst += self.dma_job(j)
        self.pre1 = self.prefetch(((S_WQ, 12), (S_W1, 14))) if c.pre & 1 else []
        self.pre2 = self.prefetch(((S_W2, 14), (S_WO, 4))) if c.pre & 2 else []
        if c.pre1_gap < 0: burst += self.pre1
        h, r, g16, c8 = TMP + 16, TMP + 17, TMP + 18, TMP + 19
        l += [f"v_lshrrev_b32 v{h}, 5, v{vL}", f"v_bfe_u32 v{r}, v{vL}, 2, 2", f"v_and_b32 v{g16}, 16, v{vL}", f"v_and_b32 v{c8}, 3, v{vL}",
              f"v_lshlrev_b32 v{c8}, 3, v{c8}", f"v_lshl_or_b32 v{c8}, v{g16}, 1, v{c8}",
              f"v_lshrrev_b32 v{vT}, 1, v{r}", f"v_lshl_or_b32 v{g16}, v{vT}, 6, v{c8}",
              f"v_lshl_add_u32 v{g16}, v{r}, 7, v{g16}",
              f"v_lshl_add_u32 v{vWR}, v{h}, 10, v{g16}", f"v_xor_b32 v{vWR+1}, 64, v{vWR}",
              f"v_lshl_add_u32 v{vW2R}, v{h}, 9, v{g16}", f"v_add_u32 v{vW2R}, s{sL4K}, v{vW2R}", f"v_xor_b32 v{vW2R+1}, 64, v{vW2R}"]
        for wn in (1, 2):
            l += [f"v_add_u32 v{vWR+2*wn+t}, {wn<<16}, v{vWR+t}" for t in range(2)]
            l += [f"v_add_u32 v{vW2R+2*wn+t}, {wn<<16}, v{vW2R+t}" for t in range(2)]
        if A:
            l += [f"v_lshl_add_u32 v{vHR}, v{r}, 6, v{c8}", f"v_lshl_add_u32 v{vHR}, v{h}, 9, v{vHR}",
                  f"v_add_u32 v{vHR+1}, 0x10000, v{vHR}", f"v_add_u32 v{vHR+2}, 0x20000, v{vHR}"]
        l += [f"v_bfe_u32 v{vT}, v{vL}, 1, 3", f"v_xor_b32 v{vT}, v{vT}, v{h}", f"v_lshlrev_b32 v{vT}, 4, v{vT}",
              f"v_and_b32 v{g16}, 31, v{vL}", f"v_lshl_add_u32 v{vT}, v{g16}, 7, v{vT}", f"v_add_u32 v{vXR}, s{sL4K}, v{vT}"]
        l += [f"v_xor_b32 v{vXR+u}, {32*u}, v{vXR}" for u in range(1, 4)]
        for wn in (1, 2): l += [f"v_add_u32 v{vXR+4*wn+u}, {wn<<16}, v{vXR+u}" for u in range(4)]
        l += [f"v_and_b32 v{vT}, 7, v{vL}", f"v_bfe_u32 v{g16}, v{vL}, 4, 1", f"v_lshlrev_b32 v{vGR}, 4, v{h}", f"s_add_u32 s{sT1}, s{sOX}, {GATE_L}",
              f"v_add_u32 v{vGR}, s{sT1}, v{vGR}", f"v_mov_b32 v{c8}, {ZERO_L+64}",
              Atom([f"v_cmp_eq_u32 vcc, v{vT}, v{g16}", f"v_cndmask_b32 v{vGR}, v{c8}, v{vGR}, vcc"]),
              f"v_add_u32 v{vT}, {ZERO_L+64}, v{vL16}"] + [f"v_mov_b32 v{TMP+24+k}, 0" for k in range(4)] + [f"ds_write_b128 v{vT}, {vr(TMP+24)}"]
        l += [f"v_lshl_add_u32 v{vT}, v{h}, 2, v{r}", f"v_lshlrev_b32 v{vT}, 5, v{vT}", f"v_and_b32 v{g16}, 3, v{vL}", f"v_lshl_add_u32 v{vT}, v{g16}, 3, v{vT}",
              f"v_and_b32 v{g16}, 16, v{vL}", f"v_lshl_add_u32 v{vT}, v{g16}, 5, v{vT}", f"v_add_u32 v{vWPR}, {WPHI_L}, v{vT}",
              f"v_mov_b32 v{vT}, 0x3f80", Atom([f"v_cmp_eq_u32 vcc, 0, v{h}", f"v_cndmask_b32 v{vT}, 0, v{vT}, vcc"]), f"v_accvgpr_write_b32 a{aONE}, v{vT}"]
        l += [f"v_accvgpr_write_b32 a{k}, 0" for k in (aONE + 1, aONE + 2, aONE + 3, aBIAS + 1, aBIAS + 3, aBIAS + 5, aBIAS + 7, aBIAS + 8, aBIAS + 9)]
        early, l = l, []
        for i in range(8): l += rot(i, sO2 + i, st2 // 2)
        l += [f"v_add_u32 v{vWG1+i}, {1024 if A else 128}, v{vWG0+i}" for i in range(2)]
        l += [f"s_mul_i32 s{sT2}, s{sW}, {16*st2}", f"s_add_u32 s{sT2}, s{sT2}, s{sOH}", f"v_mul_u32_u24 v{vWG2}, {st2}, v{R8}",
              f"v_add3_u32 v{vWG2}, v{vWG2}, v{C16}, s{sT2}", f"v_add_u32 v{vWG2+1}, {8*st2-1024}, v{vWG2}"]
        if A:
            l += [f"v_lshrrev_b32 v{vT}, 2, v{vL}", f"v_mul_u32_u24 v{vWGH}, 3584, v{vT}", f"v_and_b32 v{vT}, 3, v{vL}",
                  f"v_lshl_add_u32 v{vWGH}, v{vT}, 4, v{vWGH}", f"v_add_u32 v{vWGH}, s{sOH+1}, v{vWGH}"]
            l += [f"v_add_u32 v{vWGH+i}, {i*(16*3584-1024)}, v{vWGH}" for i in range(1, 4)]
            for k in range(2):
                l += [f"s_add_u32 s{sT1}, s{sW}, s{sRHO}", f"s_add_u32 s{sT1}, s{sT1}, {4*k}", f"s_and_b32 s{sT1}, s{sT1}, 7", f"s_mul_i32 s{sOH+k}, s{sT1}, {64*3584}"]
        for i in range(8):
            l += [f"s_add_u32 s{sT1}, s{sRHO2}, {i}", f"s_and_b32 s{sT1}, s{sT1}, 7", f"s_lshl_b32 s{sKA+i}, s{sT1}, 10",
                  f"s_and_b32 s{sT1}, s{sT1}, 4", f"s_lshl_b32 s{sT1}, s{sT1}, 14", f"s_lshl4_add_u32 s{sKB+i}, s{sKA+i}, s{sT1}"]
        l += [f"v_lshl_add_u32 v{vT}, v{R8}, 10, v{C16}", f"v_lshl_add_u32 v{vT}, s{sCB}, 7, v{vT}",
              f"s_lshl_b32 s{sT1}, s{sW}, 18", f"s_add_u32 s{sT1}, s{sT1}, {768*1024}", f"v_add_u32 v{vW2G}, s{sT1}, v{vT}", f"v_add_u32 v{vW2G+2}, {64*1024}, v{vW2G}",
              f"s_mul_i32 s{sT1}, s{sW}, {192*1024}", f"v_add_u32 v{vW2G+4}, s{sT1}, v{vT}", f"v_add_u32 v{vW2G+6}, {64*1024}, v{vW2G+4}",
              f"v_lshl_add_u32 v{vW2G+8}, s{sW}, 17, v{vT}"]
        l += [f"v_add_u32 v{vW2G+2*k+1}, 7168, v{vW2G+2*k}" for k in range(5)]
        l += [f"s_mul_i32 s{sT1}, s{sRB2}, {2*RT_STRIDE}", f"s_mul_i32 s{sT2}, s{sW}, {36*1024}", f"s_add_u32 s{sT1}, s{sT1}, s{sT2}", f"s_add_u32 s{sT1}, s{sT1}, {AF}",
              f"v_add_u32 v{vAL}, s{sT1}, v{vL16}"]
        l += [f"v_add_u32 v{vAL+k}, {SEG0[k>>1]*1024 + (k&1)*RT_STRIDE}, v{vAL}" for k in range(1, 10)]
        h = TMP + 16
        l += [f"s_lshl2_add_u32 s{sT1}, s{sRB}, s{sW}", f"s_mul_i32 s{sT1}, s{sT1}, {RT_STRIDE}",
              f"s_lshr_b32 s{sT2}, s{sHG}, 1", f"s_mul_i32 s{sT2}, s{sT2}, {36*1024}", f"s_add_u32 s{sT1}, s{sT1}, s{sT2}",
              f"s_lshl_b32 s{sT2}, s{sPAR}, 12", f"s_add_u32 s{sT1}, s{sT1}, s{sT2}", f"s_add_u32 s{sT1}, s{sT1}, {AF + (16*1024 if A else 0)}",
              f"v_add_u32 v{vFV}, s{sT1}, v{vL16}", f"s_lshl_b32 s{sT2}, s{sPAR}, 11", f"s_sub_u32 s{sTA}, {8*1024}, s{sT2}",
              f"s_lshl4_add_u32 s{sT1}, s{sRB}, s{sCG}", f"s_lshl_b32 s{sT1}, s{sT1}, 5", f"s_add_u32 s{sT1}, s{sT1}, s{sW}",
              f"s_lshl_b32 s{sT1}, s{sT1}, 2", f"v_mov_b32 v{vFA}, s{sT1}",
              f"s_lshr_b32 s{sT1}, s{sRB2}, 1", f"s_lshl2_add_u32 s{sT1}, s{sT1}, s{sW}", f"s_lshl_b32 s{sT1}, s{sT1}, 9",
              f"s_and_b32 s{sT2}, s{sRB2}, 1", f"s_lshl3_add_u32 s{sT1}, s{sT2}, s{sT1}",
              f"v_bfe_u32 v{vT}, v{vL}, 1, 2", f"v_lshlrev_b32 v{vPA}, 7, v{vT}", f"v_and_b32 v{vT}, 1, v{vL}", f"v_lshl_add_u32 v{vPA}, v{vT}, 2, v{vPA}",
              f"v_add_u32 v{vPA}, s{sT1}, v{vPA}",
              f"s_lshl2_add_u32 s{sT1}, s{sRB2}, s{sW}", f"s_lshl_b32 s{sT1}, s{sT1}, 7", f"s_add_u32 s{sT1}, s{sT1}, s{sCB}", f"s_lshl_b32 s{sT1}, s{sT1}, 7",
              f"v_and_b32 v{vT}, 7, v{vL}", f"v_lshlrev_b32 v{vT}, 4, v{vT}", f"v_lshl_add_u32 v{vT}, v{R8}, 10, v{vT}", f"v_add_u32 v{vPD}, s{sT1}, v{vT}",
              f"s_lshl2_add_u32 s{sT1}, s{sHG}, s{sW}", f"s_lshl_b32 s{sT1}, s{sT1}, 4"]
        ch = self.chunk
        if A:
            l += [f"s_add_u32 s{sT1}, s{sT1}, s{sRB}",
                  f"v_and_b32 v{vKVST}, 0x33, v{vL}", f"v_and_b32 v{vT}, 4, v{vL}", f"v_lshl_or_b32 v{vKVST}, v{vT}, 1, v{vKVST}",
                  f"v_bfe_u32 v{vT}, v{vL}, 3, 1", f"v_lshl_or_b32 v{vKVST}, v{vT}, 2, v{vKVST}", f"v_and_b32 v{vZST}, 31, v{vKVST}",
                  f"s_lshl_b32 s{sT2}, s{sT1}, 7", f"s_add_u32 s{sT2}, s{sT2}, {ZP}", f"v_lshl_add_u32 v{vZST}, v{vZST}, 2, s{sT2}",
                  f"s_lshl_b32 s{sT2}, s{sT1}, 10", f"s_add_u32 s{sT2}, s{sT2}, {KVP}", f"v_lshl_add_u32 v{vKVST}, v{vKVST}, 4, s{sT2}",
                  f"v_and_b32 v{vT}, 31, v{vL}", f"v_lshl_add_u32 v{vT}, s{sW}, 5, v{vT}", f"v_lshlrev_b32 v{vKXW}, 5, v{vT}",
                  f"v_lshl_add_u32 v{vKXW}, v{h}, 4, v{vKXW}", f"v_add_u32 v{vKXW+1}, 0x10000, v{vKXW}", f"v_add_u32 v{vKXW+2}, 0x20000, v{vKXW}",
                  f"s_mov_b32 s{sT1}, {ch['P0']*CH}", f"s_mov_b32 s{sT2}, {ch['P1']*CH}",
                  Atom([f"s_cmp_lt_u32 s{sW}, 2", f"s_cselect_b32 s{sT1}, s{sT1}, s{sT2}"]),
                  f"s_and_b32 s{sT2}, s{sW}, 1", f"s_lshl_b32 s{sT2}, s{sT2}, 13", f"s_add_u32 s{sT1}, s{sT1}, s{sT2}",
                  f"v_lshl_add_u32 v{vKXP}, v{vL}, 3, s{sT1}", f"s_add_u32 s{sT2}, s{sL4K}, {ch['V']*CH}", f"v_lshl_add_u32 v{vKXV}, v{vL}, 3, s{sT2}",
                  f"s_mov_b32 s{sP}, 0x3f803f80"]
        else:
            T0, T1 = TMP + 20, TMP + 21
            l += [f"s_lshl_b32 s{sT2}, s{sT1}, 10", f"s_add_u32 s{sT2}, s{sT2}, {KVP}", f"v_add_u32 v{vKVL}, s{sT2}, v{vL16}",
                  f"s_lshl_b32 s{sT2}, s{sT1}, 7", f"s_add_u32 s{sT2}, s{sT2}, {ZP}", f"v_and_b32 v{vT}, 31, v{vL}", f"v_lshl_add_u32 v{vZLD}, v{vT}, 2, s{sT2}",
                  f"v_lshl_add_u32 v{vZLD}, v{h}, 10, v{vZLD}", f"v_add_u32 v{vKVT}, {KVT_L}, v{vL16}",
                  f"s_lshl_b32 s{sT1}, s{sHG}, 6", f"s_add_u32 s{sT1}, s{sT1}, s{sW}", f"s_lshl_b32 s{sT1}, s{sT1}, 2",
                  f"v_and_b32 v{vT}, 15, v{vL}", f"v_lshl_add_u32 v{vKPA}, v{vT}, 11, s{sT1}",
                  f"s_movk_i32 s{sP}, 0x3f80",
                  f"v_bfe_u32 v{T0}, v{vL}, 2, 1", f"v_xor_b32 v{T0}, v{T0}, v{h}", f"v_bfe_u32 v{T1}, v{vL}, 4, 1", f"v_or_b32 v{T0}, v{T0}, v{T1}",
                  f"v_bfe_u32 v{T1}, v{vL}, 3, 1", f"v_lshlrev_b32 v{T1}, 1, v{T1}", f"v_bfe_u32 v{vT}, v{vL}, 1, 1", f"v_or_b32 v{T1}, v{T1}, v{vT}",
                  f"v_lshl_or_b32 v{T0}, v{T0}, 2, v{T1}",
                  f"v_and_b32 v{T1}, 1, v{vL}", f"v_lshlrev_b32 v{T1}, 4, v{T1}", f"v_lshlrev_b32 v{T1}, v{T1}, s{sP}"]
            for k in range(4):
                l += [Atom([f"v_cmp_eq_u32 vcc, {k}, v{T0}", f"v_cndmask_b32 v{vT}, 0, v{T1}, vcc", f"v_accvgpr_write_b32 a{aC0+k}, v{vT}"])]
            l += [f"v_lshrrev_b32 v{T0}, 4, v{vL}", f"v_mov_b32 v{T1}, s{sP}",
                  Atom([f"v_cmp_eq_u32 vcc, 1, v{T0}", f"v_cndmask_b32 v{vT}, 0, v{T1}, vcc", f"v_accvgpr_write_b32 a{aC1}, v{vT}"])]
            l += [f"v_accvgpr_write_b32 a{aC1+k}, 0" for k in range(1, 4)]
        l += [f"s_mov_b32 s{sLOG}, {LOG2E}", f"s_mov_b32 s{sSPIN}, 0"]
        l = norm(l); n0 = len(l) * c.late_pct // 100
        self.late = l[n0:]
        l = norm(early) + l[:n0]; burst = norm(burst)
        out, k = head, 0
        for n, b in enumerate(burst):
            out.append(b)
            k1 = min(len(l), c.per_burst * (n + 1))
            out += l[k:k1]; k = k1
        return out + l[k:] + ["s_waitcnt lgkmcnt(0)", Call(lambda p: setattr(p, "ds_done", p.ds_n))] + self.stamp("burst")

    def after_x(self):
        A = self.typ == "A"
        l = [f"v_mov_b32 v{vAS}, v{vFV}", f"v_mov_b32 v7, v{vPD}"]
        if A: l += [f"v_add_u32 v{vAS+1}, s{sTA}, v{vFV}"]
        else: l += [f"v_add_u32 v{vAS+1}, {8*1024}, v{vFV}", f"v_add_u32 v{vAS+2}, {28*1024}, v{vFV}"]
        return l

    def body(self, p):
        c, A = self.cfg, self.typ == "A"
        self.plan(); self.build_steps()
        p.add(self.setup())
        steps, P1 = self.steps, self.p1
        prim, gap_at, g = [], [], 0
        first_of = {name: f for name, f, n, jobs in self.stages}
        jobs_of = {name: jobs for name, f, n, jobs in self.stages}
        nxt = 0
        extra, extra_m = {}, {}
        chk = [P1 + int(v) for v in (c.A_chk if A else c.B_chk).split(",")]
        for sg, (need, mask, nm) in enumerate(((1, "0xcc", "b0"), (2, "0xcc", "b1"), (2, "0x33", "a0"), (3, "0x33", "a1"), (3, "0xcc", "o"))):
            lead = c.poll_lead * (1 if chk[sg] - c.poll_lead >= P1 else 2 if not A else 4)
            assert sg == 0 or chk[sg] - lead >= chk[sg - 1]
            extra_m.setdefault(chk[sg] - lead, []).append(self.poll_load(vPD, vPA))
            extra.setdefault(chk[sg], []).extend(self.stamp("pre_" + nm) + [self.poll_check(vPD, vPA, need, mask, nm)] + self.stamp("chk_" + nm))
        for it in range(self.nsteps):
            gap_at.append(g)
            pre = []
            if it in self.bar:
                nm = self.bar[it]
                for j in jobs_of.get(nm, []): pre.append(WaitVM(j))
                if nm == "c0": pre.append(WaitVM("misc"))
                if nm[0] == "c" or nm == "b1_0" or (A and nm == "b2_1"): pre.append(WaitLGKM0())
                pre.append("s_barrier")
                pre += self.stamp(nm)
                if nm == "c1" and not A: pre += self.leader_go()
                if nm == "c1":
                    for t in range(2):
                        pre += [f"ds_read_b64_tr_b16 {ar(aWPHI+4*t,2)}, v{vWPR} offset:{t*1024}", f"ds_read_b64_tr_b16 {ar(aWPHI+4*t+2,2)}, v{vWPR} offset:{t*1024+256}"]
            rds = []
            while nxt < self.nsteps and self.rd_it[nxt] <= it:
                if steps[nxt].p2 and first_of[steps[nxt].stage] == nxt: pre.append(WaitVM(steps[nxt].stage))
                rds += steps[nxt].reads; nxt += 1
            mm = steps[it].mfmas
            if it == 0:
                k = len(steps[0].reads) * c.la
                prim += pre + rds[:k]; pre, rds = [], rds[k:]
            prim += extra.get(it, [])
            for n, m in enumerate(mm):
                prim.append(m)
                if n == 0:
                    if it >= P1: prim += self.stamp(f"use{it-P1}")
                    prim += pre
                k = 2 if n + 1 < len(mm) else len(rds)
                prim += rds[:k]; rds = rds[k:]
                if n == 0: prim += extra_m.get(it, [])
                if isinstance(m, str): prim.append(Gap()); g += 1
        gap_at.append(g)
        G = lambda it: gap_at[it]
        fill = []
        cur = 0
        self.report = []
        for j in self.order:
            if j in self.first or j in ("P0", "P1", "V"): continue
            g0 = max(cur, G(self.avail[j]))
            pace = c.pace if g0 < G(P1) else c.pace2
            if j[0] in "xs" or j == "w1_0": pace = c.pace0
            items = self.dma_job(j)
            if j[0] == "s": items += self.dma_job(f"s{int(j[1:])+1}")
            user = [f for name, f, n, jobs in self.stages if j in jobs][0]
            dead = G(self.rd_it[user]) - 1
            g1 = min(g0 + pace - 1, dead)
            assert g0 <= dead, (j, g0, dead)
            fill.append((items, g0, g1)); cur = g1 + 1
            self.report.append((j, self.chunk[j], g0, dead - g1))
            if j == "x7": fill.append((self.after_x(), g1 + 1, g1 + 1))
        cur = 0
        for j in range(36):
            it = max(P1 + j - c.la_a, chk[seg_of(j)]) if j >= 8 else chk[0]
            if 8 <= j < 24: it = max(it, P1)
            if j >= 24: it = max(it, P1 + j - 24 + 1)
            dead = G(P1 + j) - 1
            g0 = min(max(cur, G(it)), dead)
            g1 = min(g0 + c.apace - 1, dead)
            fill.append((self.a_load(j), g0, g1)); cur = g1 + 1
            self.report.append((f"a{j}", 0, g0 - G(P1), dead - g1))
        GP = G(P1)
        fill.append((self.late, 0, c.late_end))
        if c.pre1_gap >= 0: fill.append((self.pre1, c.pre1_gap, c.pre1_gap + 1))
        fill.append((self.pre2, c.pre2_gap, c.pre2_gap + 1))
        fill.append(([self.tag_load()], G(40), G(40)))
        fill.append((self.final_addr(), G(P1 + 30), G(P1 + 33)))
        if A:
            fill.append((self.a_block1(), G(32) + 1, G(64) - 1))
            bar21 = [b for b in self.bar if self.bar[b] == "b2_1"][0]
            fill.append((self.a_vepi() + self.tag_check(), G(64) + 3, G(bar21) - 1))
            kv, tail = self.a_kv()
            g0 = G(bar21)
            fill.append((kv, g0, g0 + c.a_kvn))
            fill.append((tail + self.stamp("kvst"), g0 + c.a_kvn + 3, g0 + c.a_kvn + 5))
            fill.append((self.flag(1, "kv") + self.stamp("kvflag"), g0 + c.a_kvf - 1, g0 + c.a_kvf))
            fill.append((self.h_epi(ACX, vAS, 0, "h0") + self.h_epi(ACX + 16, vAS, 1, "h0") + self.stamp("e0"), G(96) + 3, GP + c.a_e0))
            fill.append((self.h_epi(ACY, vAS + 1, 0, "h1") + self.stamp("e1"), max(GP + c.a_e0 + 1, GP + 1), GP + c.a_e1))
            fill.append((self.flag(2, "h0") + self.stamp("f0"), GP + c.a_f0 - 1, GP + c.a_f0))
            fill.append((self.flag(3, "h1") + self.stamp("f1"), GP + c.a_f1 - 1, GP + c.a_f1))
            assert GP + c.a_f0 < G(chk[2]) and GP + c.a_f1 < G(chk[3]) and c.a_f0 > c.a_e0 and c.a_f1 > c.a_e1 and c.a_kvf > c.a_kvn + 6
        else:
            e = self.gate_fin() + self.h_epi(ACX, vAS, 0, "h0") + self.h_epi(ACX + 16, vAS, 1, "h0") + self.stamp("e0") + self.tag_check()
            fill.append((e, G(32) + 3, G(64) - c.b_e0))
            fill.append((self.flag(1, "h0") + self.stamp("f0"), G(64) + c.b_f0 - 1, G(64) + c.b_f0))
            fill.append((self.h_epi(ACY, vAS + 1, 0, "h1") + self.h_epi(ACY + 16, vAS + 1, 1, "h1") + self.stamp("e1"), G(64) + 3, G(96) - c.b_e1))
            q = self.b_qepi()
            cut = lambda pct: len(q) * pct // 100
            a, b, d = cut(c.b_qf), cut(c.b_qp), cut(c.b_qk)
            assert a <= b <= d
            q = (q[:a] + self.flag(2, "h1") + self.stamp("f1") + q[a:b] + [self.poll_load(vTG, vKPA)] + q[b:d] + self.stamp("pre_kv") +
                 [self.poll_check(vTG, vKPA, 1, "0xffff", "kv")] + self.stamp("chk_kv") + self.b_gather_loads() + q[d:] + self.stamp("qe"))
            n0 = len(q) * c.b_q0 // 100
            g0 = GP + c.b_qn
            fill.append((q[:n0], GP - 1, GP - 1))
            fill.append((q[n0:], GP, g0))
            sm, tail = self.b_gather_sum()
            fill.append((sm, g0 + 1, g0 + c.b_sn)); g0 += c.b_sn + c.b_sg
            fill.append((tail + self.b_o() + self.stamp("ost"), g0 + 1, g0 + c.b_on)); g0 += c.b_on
            self.kv_free = g0
            fill.append((self.flag(3, "o") + self.stamp("oflag"), g0 + c.b_of - 1, g0 + c.b_of))
            assert g0 + c.b_of < G(chk[4]) and G(64) + c.b_f0 < G(chk[0]) and G(chk[2]) > GP + c.b_qn + c.b_sn
            assert n0 > a + 2 or G(chk[1]) > GP + c.b_qn
        stream = merge(prim, fill)
        if c.drop: stream = self.dropper(stream)
        p.add(stream)
        p.add(self.stamp("mend"))
        p.add(self.final())
        if c.diag:
            p.add(["s_waitcnt vmcnt(0)"] + self.stamp("end"))
            p.add([f"v_writelane_b32 v{vST}, s{sSPIN}, 31", f"s_lshl2_add_u32 s{sT1}, s2, s{sW}", f"s_lshl_b32 s{sT1}, s{sT1}, 7", f"s_add_u32 s{sT1}, s{sT1}, {STAMP}",
                   f"v_lshl_add_u32 v{vT}, v{vL}, 2, s{sT1}", "s_mov_b32 exec_hi, 0", f"buffer_store_dword v{vST}, v{vT}, {srd(S_WS)}, 0 offen"])
        p.add("s_endpgm")

    def dropper(self, stream):
        d = self.cfg.drop.split(",")
        out = []
        def keep(x):
            if isinstance(x, WaitVM): return "dma" not in d and not ("store" in d and x.tag in ("h0", "h1", "kv", "o"))
            if not isinstance(x, I): return True
            if x.mn.startswith("v_writelane"): return True
            if "dma" in d and x.kind == "vmem" and x.lds: return False
            if "store" in d and x.kind == "vmem" and "store" in x.mn: return False
            if "bar" in d and x.mn == "s_barrier": return False
            if "epi" in d and x.kind in ("valu", "trans") and not all(r[1] < 64 for r in x.w): return False
            if "read" in d and x.mn.startswith("ds_read"): return False
            if "poll" in d and x.mn.startswith("s_cbranch"): return False
            if "aload" in d and x.kind == "vmem" and x.async_dst: return False
            return True
        for x in stream:
            if isinstance(x, Atom): out += [y for y in x.items if keep(y)]
            elif keep(x): out.append(x)
        return out


Cfg.per_burst = 6


def prologue(cfg):
    p = Prog()
    if cfg.diag: p.add([("s_memtime" if cfg.cyc else "s_memrealtime") + " s[98:99]"])
    p.add(["s_cmp_ge_u32 s2, 256", "s_cbranch_scc1 L_end"])
    for s, off in ((S_X, 0), (S_WQ, 8), (S_W1, 40), (S_WS, 88), (S_GATE, 64), (S_WPHI, 16), (S_B1, 48)):
        p.add(f"s_load_dwordx2 s[{s}:{s+1}], s[0:1], {off}")
    a, b, d = sOH, sOH + 1, sKB
    p.add(["s_getpc_b64 s[48:49]", f"v_lshrrev_b32 v{vT}, 6, v0", f"v_and_b32 v{vL}, 63, v0", f"s_lshr_b32 s{a}, s2, 3",
           f"v_readfirstlane_b32 s{sW}, v{vT}", f"v_lshlrev_b32 v{vL16}, 4, v{vL}", "s_and_b32 s48, s48, 0xffffff00",
           f"s_lshl2_add_u32 s{b}, s{a}, s{sW}", f"s_and_b32 s{b}, s{b}, 63", f"s_min_u32 s{b}, s{b}, {cfg.code_kb-1}",
           f"s_lshl_b32 s{b}, s{b}, 10", f"s_add_u32 s48, s48, s{b}", "s_addc_u32 s49, s49, 0",
           f"v_mov_b32 v5, s49", f"v_add_co_u32 v4, vcc, s48, v{vL16}", "v_addc_co_u32 v5, vcc, 0, v5, vcc",
           f"global_load_dwordx4 {vr(TMP)}, v[4:5], off"])
    p.add([f"s_and_b32 s{b}, s2, 7"])
    if cfg.map == 0:
        p.add([f"s_lshr_b32 s{sRB}, s{b}, 2", f"s_lshr_b32 s{d}, s{a}, 2", f"s_lshl3_add_u32 s{sRB}, s{sRB}, s{d}",
               f"s_and_b32 s{sCG}, s{b}, 3", f"s_and_b32 s{d}, s{a}, 3", f"s_lshl2_add_u32 s{sCG}, s{sCG}, s{d}"])
    else:
        p.add([f"s_lshr_b32 s{sRB}, s{b}, 1", f"s_lshr_b32 s{d}, s{a}, 3", f"s_lshl2_add_u32 s{sRB}, s{sRB}, s{d}",
               f"s_and_b32 s{sCG}, s{b}, 1", f"s_and_b32 s{d}, s{a}, 7", f"s_lshl3_add_u32 s{sCG}, s{sCG}, s{d}"])
    p.add([f"s_lshr_b32 s{sHG}, s{sCG}, 1",
           f"s_lshr_b32 s{d}, s{a}, 3", f"s_lshl2_add_u32 s{sRB2}, s{b}, s{d}", f"s_and_b32 s{sCB}, s{a}, 7",
           f"s_lshl_b32 s{sL2K}, s{sW}, 11", f"s_lshl_b32 s{sL4K}, s{sW}, 12", f"s_xor_b32 s{sLEAD}, s2, 8", f"s_or_b32 s{sLEAD}, s{sLEAD}, s{sW}"])
    p.add((f"s_lshl1_add_u32 s{sRHO}, s{sCG}, s{sRB}" if cfg.map == 0 else f"s_lshl1_add_u32 s{sRHO}, s{sRB}, s{sCG}") if cfg.rot & 1 else f"s_mov_b32 s{sRHO}, 0")
    p.add(f"s_lshl1_add_u32 s{sRHO2}, s{sRB2}, s{sCB}" if cfg.rot & 2 else f"s_mov_b32 s{sRHO2}, 0")
    p.add([f"s_lshl_b32 s{d}, s{sRHO}, 7", f"s_and_b32 s{sOX}, s{d}, 0x380"])
    for i in range(1, 8): p.add([f"s_add_u32 s{sOX+i}, s{d}, {128*i}", f"s_and_b32 s{sOX+i}, s{sOX+i}, 0x380"])
    sizes = {S_X: 2048*1024, S_WQ: 512*3072, S_W1: 512*3584, S_WS: WS_BYTES + (0x20000 if cfg.diag else 0), S_GATE: 1024, S_WPHI: 16384, S_B1: 3584,
             S_W2: 1792*1024, S_WO: 512*1024, S_OUT: 2048*1024, S_DBG: 256}
    for s in (S_X, S_WQ, S_W1, S_WS, S_GATE, S_WPHI, S_B1): p.add([f"s_mov_b32 s{s+2}, {sizes[s]}", f"s_mov_b32 s{s+3}, 0x20000"])
    p.add([f"v_lshrrev_b32 v62, 3, v{vL}", f"v_and_b32 v61, 7, v{vL}", f"v_lshrrev_b32 v{vT}, 4, v{vL}",
           f"s_lshl2_add_u32 s{d}, s{sRB}, s{sW}", f"s_lshl_b32 s{d}, s{d}, 15",
           f"v_xor_b32 v{vXG}, v61, v{vT}", f"v_lshl_add_u32 v{vXG}, v{vXG}, 4, s{d}", f"v_lshl_add_u32 v{vXG}, v62, 10, v{vXG}",
           f"v_xor_b32 v{vXG+1}, 64, v{vXG}", f"v_add_u32 v{vXG+1}, 7168, v{vXG+1}", f"v_add_u32 v{vXG+2}, {2*7168}, v{vXG}", f"v_add_u32 v{vXG+3}, {2*7168}, v{vXG+1}",
           f"v_and_b32 v{vT}, 1, v{vT}", f"v_lshlrev_b32 v{vT}, 2, v{vT}", f"v_xor_b32 v61, v61, v{vT}", "v_lshlrev_b32 v61, 4, v61",
           "s_waitcnt lgkmcnt(0)"])
    if cfg.diag: p.add(f"v_writelane_b32 v{vST}, s98, 0")
    for s, off in ((S_W2, 56), (S_WO, 24), (S_OUT, 72), (S_DBG, 80)):
        p.add([f"s_load_dwordx2 s[{s}:{s+1}], s[0:1], {off}", f"s_mov_b32 s{s+2}, {sizes[s]}", f"s_mov_b32 s{s+3}, 0x20000"])
    p.add([f"s_bitcmp1_b32 s{sCG}, 0", "s_cbranch_scc1 L_typeB"])
    return p


def generate(cfg):
    side = []
    p0 = prologue(cfg)
    texts, info = [p0.text()], []
    for typ in ("A", "B"):
        p = p0.fork()
        g = Gen(typ, cfg, side)
        if typ == "B": p.add("L_typeB:")
        g.body(p)
        texts.append(p.text())
        info.append((typ, p.count, p.nops, p.issue, g.report, g.stamps))
    if cfg.diag: texts[0] = ("; cyc\n" if cfg.cyc else "") + "; stamps A " + ",".join(info[0][5]) + "\n; stamps B " + ",".join(info[1][5]) + "\n" + texts[0]
    hdr = open(__file__.replace("gen.py", "header.txt")).read()
    s = hdr + f"; @launch grid=(256,1,1) block=(256,1,1) lds=163840\n"
    s += f'.amdgcn_target "amdgcn-amd-amdhsa--gfx950"\n.text\n.globl {KN}\n.p2align 8\n.type {KN},@function\n{KN}:\n'
    s += "\n".join(texts) + "\n" + "\n".join(side) + "\nL_end:\n    s_endpgm\n"
    s += f".if (. - {KN}) > {cfg.code_kb*1024}\n.error \"code_kb too small\"\n.endif\n"
    s += f".fill ({cfg.code_kb*1024} - (. - {KN})) / 4, 4, 0xbf800000\n    s_endpgm\n"
    s += f""".section .rodata,"a"
.p2align 6
.amdhsa_kernel {KN}
  .amdhsa_next_free_vgpr 512
  .amdhsa_next_free_sgpr 102
  .amdhsa_accum_offset 256
  .amdhsa_group_segment_fixed_size 0
  .amdhsa_kernarg_size 96
  .amdhsa_user_sgpr_count 2
  .amdhsa_user_sgpr_kernarg_segment_ptr 1
  .amdhsa_system_sgpr_workgroup_id_x 1
.end_amdhsa_kernel
"""
    return s, info


if __name__ == "__main__":
    cfg = Cfg()
    out = None
    for a in sys.argv[1:]:
        if "=" in a:
            k, v = a.split("=", 1)
            setattr(cfg, k, type(getattr(cfg, k))(int(v)) if not isinstance(getattr(cfg, k), str) else v)
        else: out = a
    s, info = generate(cfg)
    open(out or f"cdna_kernels/{NAME}.s", "w").write(s)
    for typ, cnt, nops, issue, rep, st in info:
        print(typ, cnt, "nops", nops, "issue", issue)
        print("   ", " ".join(f"{j}@{ch}:{g0}+{lead}" for j, ch, g0, lead in rep))
```
